```python
import torch

def _softmax(x, axis=-1):
    return torch.softmax(x, dim=axis)

def _gelu(x):
    return torch.nn.functional.gelu(x, approximate='tanh')

def _silu(x):
    return torch.nn.functional.silu(x)

def _sigmoid(x):
    return torch.sigmoid(x)

def _layernorm(x, axis=-1, eps=1e-05):
    m = x.mean(dim=axis, keepdim=True)
    v = x.var(dim=axis, keepdim=True, unbiased=False)
    return (x - m) / torch.sqrt(v + eps)

def _scatter_add(tgt, idx, src, axis=0):
    return tgt.clone().index_add_(axis, idx, src)

def _segment_sum(src, seg, n):
    out = torch.zeros((n,) + src.shape[1:], dtype=src.dtype)
    return out.index_add_(0, seg, src)

def _pad(x, pw):
    flat = tuple((v for pair in reversed(pw) for v in pair))
    return torch.nn.functional.pad(x, flat)
kernel_name = 'adaLN_cond__ssm_conv_s4__glu_gated_reglu__prompt'

def setup_inputs():

    _w = lambda a: (lambda t: t.to(torch.bfloat16) if t.is_floating_point() else t)(torch.as_tensor(a))

    def _A_setup():
        B, L, D, N = (1, 2048, 576, 128)
        A_re = -(lambda _x: torch.exp(torch.as_tensor(_x)))((lambda *s: torch.randn(*s, dtype=torch.bfloat16) * 3.2)(D, N))
        A_im = torch.pi * (lambda *s: torch.randn(*s, dtype=torch.bfloat16) * 0.05)(D, N)
        B_re = (lambda *s: torch.randn(*s, dtype=torch.bfloat16) * 0.1)(D, N)
        B_im = (lambda *s: torch.randn(*s, dtype=torch.bfloat16) * 0.1)(D, N)
        C_re = (lambda *s: torch.randn(*s, dtype=torch.bfloat16) * 0.1)(D, N)
        C_im = (lambda *s: torch.randn(*s, dtype=torch.bfloat16) * 0.1)(D, N)
        log_dt = (lambda *s: torch.randn(*s, dtype=torch.bfloat16) * 0.05)(D) * 0.5 - 4.0
        Dskip = (lambda *s: torch.randn(*s, dtype=torch.bfloat16) * 0.05)(D)
        return {'u': _w((lambda *s: torch.randn(*s, dtype=torch.bfloat16) * 0.05)(B, L, D)), 'A_re': _w(A_re), 'A_im': _w(A_im), 'B_re': _w(B_re), 'B_im': _w(B_im), 'C_re': _w(C_re), 'C_im': _w(C_im), 'log_dt': _w(log_dt), 'Dskip': _w(Dskip)}
    _A_in = _A_setup()

    def _B_setup():
        B, S, D, F = (1, 2048, 576, 4608)
        return {'x': _w((lambda *s: torch.randn(*s, dtype=torch.bfloat16) * 0.05)(B, S, D)), 'W_gate': _w((lambda *s: torch.randn(*s, dtype=torch.bfloat16) * 0.8)(D, F) * (2.0 / D) ** 0.5), 'W_up': _w((lambda *s: torch.randn(*s, dtype=torch.bfloat16) * 0.8)(D, F) * (2.0 / D) ** 0.5), 'W_down': _w((lambda *s: torch.randn(*s, dtype=torch.bfloat16) * 0.8)(F, D) * (1.0 / F) ** 0.5)}
    _B_in = _B_setup()
    return {'A_u': _A_in['u'], 'A_A_re': _A_in['A_re'], 'A_A_im': _A_in['A_im'], 'A_B_re': _A_in['B_re'], 'A_B_im': _A_in['B_im'], 'A_C_re': _A_in['C_re'], 'A_C_im': _A_in['C_im'], 'A_log_dt': _A_in['log_dt'], 'A_Dskip': _A_in['Dskip'], 'B_x': _B_in['x'], 'B_W_gate': _B_in['W_gate'], 'B_W_up': _B_in['W_up'], 'B_W_down': _B_in['W_down'], 'c': _w((lambda *s: torch.randn(*s, dtype=torch.bfloat16) * 0.2)(1, 576) * 8.0), 'w_mod': _w((lambda *s: torch.randn(*s, dtype=torch.bfloat16) * 0.2)(576, 6 * 576) * 576 ** (-0.5) * 8.0)}

def reference(A_u, A_A_re, A_A_im, A_B_re, A_B_im, A_C_re, A_C_im, A_log_dt, A_Dskip, B_x, B_W_gate, B_W_up, B_W_down, c, w_mod):

    def _A_ref(u, A_re, A_im, B_re, B_im, C_re, C_im, log_dt, Dskip):
        Bsz, L, D = u.shape
        dt = torch.exp(log_dt)[:, None]
        A = A_re + 1j * A_im
        Bc = B_re + 1j * B_im
        Cc = C_re + 1j * C_im
        logdA = dt * A
        dB = dt * Bc
        l = (lambda x, dt: x.to(dt))(torch.arange(L), A_re.dtype)
        P = torch.exp(logdA[:, :, None] * l[None, None, :])
        K = torch.einsum('dn,dnl,dn->dl', Cc, P, dB).real
        L2 = 2 * L
        Kp = _pad(K, ((0, 0), (0, L)))
        up = (lambda x, *d: x.permute(*d))(u, 0, 2, 1)
        up = _pad(up, ((0, 0), (0, 0), (0, L)))
        Kf = (lambda x, axes=(-2, -1): torch.fft.rfft2(x.float(), dim=axes))(Kp[:, None, :], axes=(-2, -1))
        Uf = (lambda x, axes=(-2, -1): torch.fft.rfft2(x.float(), dim=axes))(up[:, :, None, :], axes=(-2, -1))
        Yf = Uf * Kf[None, :, :, :]
        y = (lambda x, s, axes=(-2, -1): torch.fft.irfft2(x, s=s, dim=axes).to(torch.bfloat16))(Yf, (1, L2), axes=(-2, -1))[:, :, 0, :L]
        y = (lambda x, *d: x.permute(*d))(y, 0, 2, 1) + u * Dskip[None, None, :]
        return y

    def _B_ref(x, W_gate, W_up, W_down):
        gate = torch.einsum('bsd,df->bsf', x, W_gate)
        up = torch.einsum('bsd,df->bsf', x, W_up)
        gate = gate * (lambda x, dt: x.to(dt))(gate > 0, gate.dtype)
        h = gate * up
        return torch.einsum('bsf,fd->bsd', h, W_down)
    x = A_u
    mod = (_silu(c) @ w_mod).reshape(c.shape[0], 6, 1, -1)
    sa, ca, ga, sb, cb, gb = (mod[:, 0].clone(), mod[:, 1].clone(), mod[:, 2].clone(), mod[:, 3].clone(), mod[:, 4].clone(), mod[:, 5].clone())
    h = _layernorm(x, axis=-1) * (1 + ca) + sa
    x = x + ga * _A_ref(h, A_A_re, A_A_im, A_B_re, A_B_im, A_C_re, A_C_im, A_log_dt, A_Dskip)
    h = _layernorm(x, axis=-1) * (1 + cb) + sb
    x = x + gb * _B_ref(h, B_W_gate, B_W_up, B_W_down)
    return x
```

```python
import re

REG_RE = re.compile(r'^(-?)(?:abs\()?\|?([vas])(?:(\d+)|\[(\d+):(\d+)\])\|?\)?$')
TRANS = ('v_exp_f32', 'v_log_f32', 'v_rcp_f32', 'v_rsq_f32', 'v_sqrt_f32', 'v_sin_f32', 'v_cos_f32', 'v_rcp_iflag_f32')

def regs_of(op):
    op = op.strip()
    if op == 'vcc': return {('s', 106), ('s', 107)}
    if op == 'vcc_lo': return {('s', 106)}
    if op == 'exec': return {('s', 126), ('s', 127)}
    if op == 'm0': return {('s', 124)}
    m = REG_RE.match(op)
    if not m: return set()
    k = m.group(2)
    if m.group(3) is not None: return {(k, int(m.group(3)))}
    return {(k, i) for i in range(int(m.group(4)), int(m.group(5)) + 1)}

def split_ops(s):
    ops, depth, cur = [], 0, ''
    for ch in s:
        if ch in '[(': depth += 1
        if ch in '])': depth -= 1
        if ch == ',' and depth == 0:
            ops.append(cur.strip()); cur = ''
        else: cur += ch
    if cur.strip(): ops.append(cur.strip())
    return ops

def mfma_passes(mn):
    if mn.endswith('_f32') and ('x2_f32' in mn): return ('sgemm', 16)
    if mn.endswith('_f32') and ('x4_f32' in mn): return ('sgemm', 8)
    if '32x32x16' in mn: return ('xdl', 8)
    if '16x16x32' in mn: return ('xdl', 4)
    raise ValueError(mn)

class Ins:
    def __init__(self, text):
        self.text = text
        t = text.split(';')[0].strip()
        parts = t.split(None, 1)
        self.mn = parts[0]
        rest = parts[1] if len(parts) > 1 else ''
        ops = split_ops(rest)
        self.mods = ''
        if ops:
            last = ops[-1].split(None, 1)
            ops[-1] = last[0]
            self.mods = last[1] if len(last) > 1 else ''
        self.ops = ops
        mn = self.mn
        self.kind = 'salu'
        self.rd, self.wr = set(), set()
        self.A = self.B = self.C = set()
        R = [regs_of(o) for o in ops]
        if mn.startswith('v_mfma'):
            self.kind = 'mfma'
            self.wr = R[0]; self.A, self.B, self.C = R[1], R[2], R[3]
            self.rd = R[1] | R[2] | R[3]
            self.cls, self.passes = mfma_passes(mn)
        elif mn.startswith('v_'):
            self.kind = 'valu'
            if 'permlane' in mn and 'swap' in mn:
                self.wr = R[0] | R[1]; self.rd = R[0] | R[1]
            elif mn.startswith(('v_add_co', 'v_sub_co', 'v_addc_co', 'v_subb_co', 'v_subrev_co', 'v_mad_u64', 'v_div_scale')):
                self.wr = R[0] | R[1]; self.rd = set().union(*R[2:])
            elif mn == 'v_nop':
                pass
            else:
                self.wr = R[0]; self.rd = set().union(*R[1:]) if len(R) > 1 else set()
                if mn.startswith(('v_fmac', 'v_dot2c', 'v_pk_fmac', 'v_writelane')) or '_dpp' in mn or '_sdwa' in mn:
                    self.rd |= R[0]
            self.trans = any(mn.startswith(x) for x in TRANS)
            self.dpp = '_dpp' in mn
        elif mn.startswith('ds_'):
            self.kind = 'ds'
            if mn.startswith(('ds_read', 'ds_bpermute', 'ds_permute', 'ds_swizzle')) or '_rtn' in mn:
                self.wr = R[0]; self.rd = set().union(*R[1:])
                if 'd16' in mn: self.rd |= R[0]
            else:
                self.rd = set().union(*R)
        elif mn.startswith(('buffer_', 'global_', 'flat_')):
            self.kind = 'vmem'
            self.lds = (' lds' in (' ' + self.mods)) or ('load_lds' in mn)
            if mn in ('buffer_wbl2', 'buffer_inv'): pass
            elif self.lds:
                self.rd = set().union(*R) | {('s', 124)}
            elif '_load' in mn or ('atomic' in mn and 'sc0' in self.mods and mn.startswith('global')):
                self.wr = R[0]; self.rd = set().union(*R[1:])
            else:
                self.rd = set().union(*R)
                self.wide = None
                if 'x3' in mn or 'x4' in mn:
                    self.wide = R[0] if mn.startswith('buffer') else R[1]
        else:
            if mn.startswith(('s_cmp', 's_cbranch', 's_branch', 's_waitcnt', 's_nop', 's_barrier', 's_endpgm', 's_sleep', 's_setprio', 's_bitcmp')):
                self.rd = set().union(*R) if R else set()
            else:
                self.wr = R[0] if R else set(); self.rd = set().union(*R[1:]) if len(R) > 1 else set()
                if 'saveexec' in mn: self.wr |= {('s', 126), ('s', 127)}
    def states(self):
        if self.mn == 's_nop': return int(self.ops[0], 0) + 1
        return 1

def need(p, c):
    n = 0
    vw = {r for r in p.wr if r[0] != 's'}
    sw = {r for r in p.wr if r[0] == 's'}
    if p.kind == 'valu':
        if c.kind == 'mfma' and (vw & c.rd): n = max(n, 2)
        if c.kind == 'valu':
            if p.trans and not c.trans and (vw & c.rd): n = max(n, 1)
            if p.trans and c.trans and (vw & c.rd): n = max(n, 1)
            if c.dpp and (vw & c.rd): n = max(n, 2)
            if 'permlane' in c.mn and (vw & c.rd): n = max(n, 2)
            if c.mn.startswith(('v_readlane', 'v_readfirstlane')) and (vw & c.rd): n = max(n, 1)
            if sw & c.rd:
                n = max(n, 4 if c.mn.startswith(('v_readlane', 'v_writelane')) else 2)
            if c.mn.startswith(('v_cndmask', 'v_addc', 'v_subb')) and len(c.ops) < 4 and (sw & {('s', 106)}): n = max(n, 2)
            if '_sdwa' in p.mn and (vw & (c.rd | c.wr)): n = max(n, 1)
        if c.kind == 'vmem' and (sw & c.rd): n = max(n, 5)
        if c.kind == 'salu' and (sw & c.rd): n = max(n, 2)
    elif p.kind == 'mfma':
        idx = {2: 0, 4: 1, 8: 2, 16: 3}[p.passes]
        if p.cls == 'xdl':
            if c.kind == 'mfma':
                if p.wr & (c.A | c.B): n = max(n, [5, 8, 12, 20][idx])
                if p.wr & c.C:
                    if c.cls == 'xdl' and c.C == p.wr and c.passes == p.passes: n = max(n, [2, 0, 0, 0][idx])
                    else: n = max(n, [4, 6, 10, 18][idx])
                if (p.wr & c.wr) and not (p.wr & c.C): n = max(n, [5, 8, 12, 20][idx])
            elif c.kind in ('valu', 'ds', 'vmem'):
                if p.wr & (c.rd | c.wr): n = max(n, [5, 8, 12, 20][idx])
                if c.kind == 'valu' and (p.C & c.wr): n = max(n, [1, 3, 7, 15][idx])
        else:
            if c.kind == 'mfma':
                if p.wr & (c.A | c.B): n = max(n, [4, 6, 10, 18][idx])
                if p.wr & c.C:
                    if c.C == p.wr: n = max(n, [2, 0, 0, 0][idx])
                    else: n = max(n, [2, 4, 8, 16][idx])
            elif c.kind in ('valu', 'ds', 'vmem'):
                if p.wr & (c.rd | c.wr): n = max(n, [4, 6, 10, 18][idx])
    elif p.kind == 'vmem':
        if getattr(p, 'wide', None) and (p.wide & c.wr): n = max(n, 2 if c.kind in ('valu', 'mfma') else 1)
    elif p.kind == 'salu':
        if (('s', 124) in p.wr) and c.kind == 'vmem' and getattr(c, 'lds', False): n = max(n, 1)
    return n

class Asm:
    def __init__(self):
        self.lines = []
        self.hist = []
        self.nops = 0
    def raw(self, s): self.lines.append(s)
    def comment(self, s): self.lines.append('    ; ' + s)
    def _pad(self, n):
        while n > 0:
            k = min(n, 16)
            i = Ins(f's_nop {k-1}'); self.lines.append('    ' + i.text); self.hist.append(i); n -= k; self.nops += k
    def __call__(self, text):
        for t in text.strip().split('\n'):
            t = t.strip()
            if not t or t.startswith(';'): continue
            if t.endswith(':'):
                self.label(t[:-1]); continue
            ins = Ins(t)
            dist, pad = 0, 0
            for p in reversed(self.hist[-24:]):
                pad = max(pad, need(p, ins) - dist)
                dist += p.states()
                if dist >= 20: break
            self._pad(pad)
            self.lines.append('    ' + t); self.hist.append(ins)
    def flush(self):
        dist, pad = 0, 0
        for p in reversed(self.hist[-24:]):
            w = 0
            if p.kind == 'mfma': w = {('xdl', 4): 8, ('xdl', 8): 12, ('sgemm', 16): 18, ('sgemm', 8): 10}[(p.cls, p.passes)]
            elif p.kind == 'valu': w = 5 if any(r[0] == 's' for r in p.wr) else 2
            elif p.kind == 'vmem' and getattr(p, 'wide', None): w = 2
            elif p.kind == 'salu' and ('s', 124) in p.wr: w = 1
            pad = max(pad, w - dist)
            dist += p.states()
            if dist >= 20: break
        self._pad(pad)
    def label(self, name, flush=True):
        if flush: self.flush()
        self.lines.append(name + ':')
    def branch(self, text, flush=True):
        if flush: self.flush()
        self(text)
    def text(self): return '\n'.join(self.lines) + '\n'

def kernel_text(name, body, vgpr, sgpr, accum, agpr=0):
    nfv = accum + agpr if agpr else vgpr
    return f""".text
.globl {name}
.p2align 8
.type {name},@function
{name}:
{body}    s_endpgm
.section .rodata,"a"
.p2align 6
.amdhsa_kernel {name}
  .amdhsa_next_free_vgpr {nfv}
  .amdhsa_next_free_sgpr {sgpr}
  .amdhsa_accum_offset {accum}
  .amdhsa_group_segment_fixed_size 0
  .amdhsa_kernarg_size 144
  .amdhsa_user_sgpr_count 2
  .amdhsa_user_sgpr_kernarg_segment_ptr 1
  .amdhsa_system_sgpr_workgroup_id_x 1
  .amdhsa_float_denorm_mode_32 3
.end_amdhsa_kernel
"""
```

```python
import sys
from asmlib import Asm, kernel_text

L, D, NM, F = 2048, 576, 128, 4608
A_U, A_ARE, A_AIM, A_BRE, A_BIM, A_CRE, A_CIM, A_LDT, A_DSK, B_X, B_WG, B_WU, B_WD, C_C, W_MOD, D_OUT, D_DBG, D_WS = [8*i for i in range(18)]
MODP = 0x0
MODF = 0x10000
N1T  = 0x20000
KT   = 0x260000
GT   = 0x500000
X1   = 0x740000
H2F  = 0x980000
WGU  = 0xC00000
WD   = 0x1620000
HF   = 0x1C00000
PART = 0x2E00000
WS_END = 0x4000000

LOG2E = 0x3fb8aa3b
INV2PI = 0x3e22f983
def f32(x):
    import struct
    return struct.unpack('<I', struct.pack('<f', x))[0]
def hx(x): return hex(x & 0xffffffff)

def unpack(a, lo, hi, p, mask='0xffff0000'):
    a(f'v_lshlrev_b32 v{lo}, 16, v{p}')
    a(f'v_and_b32 v{hi}, {mask}, v{p}')
def rnd1(a, r, t=None):
    a(f'v_cvt_pk_bf16_f32 v{r}, v{r}, v{r}')
    a(f'v_and_b32 v{r}, 0xffff0000, v{r}')

NG_GEMV, NG_LN1, NG_KGEN, NG_REP = 108, 128, 576, 486

def role_gemv(a):
    a(f"""
    s_load_dwordx2 s[6:7], s[0:1], {C_C}
    s_load_dwordx2 s[8:9], s[0:1], {W_MOD}
    s_mul_i32 s10, s3, 2428
    s_lshr_b32 s10, s10, 16            ; p = wg/27
    s_mul_i32 s11, s10, 27
    s_sub_u32 s11, s3, s11             ; cg
    s_mul_i32 s12, s10, 144
    v_lshrrev_b32 v1, 4, v0
    v_and_b32 v2, 15, v0               ; c16
    v_add_u32 v3, s12, v1
    v_lshlrev_b32 v4, 1, v3            ; c offset
    s_movk_i32 s13, 6912
    v_mul_lo_u32 v5, v3, s13
    s_lshl_b32 s14, s11, 8
    v_lshl_add_u32 v5, v2, 4, v5
    v_add_u32 v5, s14, v5
    s_waitcnt lgkmcnt(0)
    """)
    W0, C0, ACC = 8, 44, 54
    for i in range(9):
        a(f'global_load_ushort v{C0+i}, v4, s[6:7] offset:{32*i}')
    for i in range(9):
        a(f'global_load_dwordx4 v[{W0+4*i}:{W0+4*i+3}], v5, s[8:9]')
        if i < 8: a(f'v_add_u32 v5, {16*6912}, v5')
    for j in range(8): a(f'v_mov_b32 v{ACC+j}, 0')
    a('s_waitcnt vmcnt(9)')
    for i in range(9): a(f'v_lshlrev_b32 v{C0+i}, 16, v{C0+i}')
    T = 62
    for i in range(9):
        a(f'v_mul_f32 v{T}, {hx(LOG2E|0x80000000)}, v{C0+i}')
        a(f'v_exp_f32 v{T}, v{T}')
        a(f'v_add_f32 v{T}, 1.0, v{T}')
        a(f'v_rcp_f32 v{T}, v{T}')
        a(f'v_mul_f32 v{C0+i}, v{C0+i}, v{T}')
        rnd1(a, C0+i)
    for i in range(9):
        a(f's_waitcnt vmcnt({8-i})')
        for q in range(4):
            unpack(a, T, T+1, W0+4*i+q)
            a(f'v_fmac_f32 v{ACC+2*q}, v{C0+i}, v{T}')
            a(f'v_fmac_f32 v{ACC+2*q+1}, v{C0+i}, v{T+1}')
    a(f"""
    v_lshlrev_b32 v6, 9, v1
    v_lshl_add_u32 v6, v2, 5, v6
    ds_write_b128 v6, v[{ACC}:{ACC+3}]
    ds_write_b128 v6, v[{ACC+4}:{ACC+7}] offset:16
    s_waitcnt lgkmcnt(0)
    s_barrier
    v_readfirstlane_b32 s15, v0
    s_cmp_ge_u32 s15, 128
    """)
    a.branch('s_cbranch_scc1 L_k1_end')
    a('v_lshlrev_b32 v6, 2, v0')
    for j in range(16): a(f'ds_read_b32 v{8+j}, v6 offset:{512*j}')
    a(f"""
    s_mul_i32 s12, s10, {3456*4}
    s_lshl_b32 s14, s11, 9
    s_add_u32 s12, s12, s14
    v_add_u32 v6, s12, v6
    s_waitcnt lgkmcnt(0)
    """)
    for st in (8, 4, 2, 1):
        for j in range(st): a(f'v_add_f32 v{8+j}, v{8+j}, v{8+j+st}')
    a(f'global_store_dword v6, v8, s[4:5] offset:{MODP}')
    a.branch('s_branch L_k1_end')

def row16_allsum(a, r):
    for sh in (8, 4, 2, 1):
        a(f'v_add_f32_dpp v{r}, v{r}, v{r} row_ror:{sh} row_mask:0xf bank_mask:0xf')

def ln_scalars(a, mean, var):
    rnd1(a, mean)
    rnd1(a, var)
    a(f'v_add_f32 v{var}, {hx(f32(1e-5))}, v{var}')
    rnd1(a, var)
    a(f'v_sqrt_f32 v{var}, v{var}')
    rnd1(a, var)
    a(f'v_rcp_f32 v{var}, v{var}')

LN1_STRIDE = 1184
def role_ln1(a):
    a(f"""
    s_load_dwordx2 s[6:7], s[0:1], {A_U}
    s_and_b32 s10, s3, 7
    s_lshr_b32 s11, s3, 3
    s_lshl_b32 s10, s10, 4
    s_add_u32 s10, s10, s11
    v_lshrrev_b32 v1, 4, v0
    v_and_b32 v2, 15, v0
    s_lshl_b32 s11, s10, 4
    v_add_u32 v3, s11, v1
    v_mul_u32_u24 v3, 1152, v3
    v_lshl_add_u32 v3, v2, 3, v3
    s_waitcnt lgkmcnt(0)
    """)
    P0, X0 = 8, 26
    for i in range(9): a(f'global_load_dwordx2 v[{P0+2*i}:{P0+2*i+1}], v3, s[6:7] offset:{128*i}')
    a(f"""
    v_mul_u32_u24 v4, {LN1_STRIDE}, v1
    v_lshl_add_u32 v4, v2, 3, v4
    s_mov_b32 s12, 0xffff0000
    """)
    for i in range(9):
        a(f's_waitcnt vmcnt({8-i})')
        for q in range(2): unpack(a, X0+4*i+2*q, X0+4*i+2*q+1, P0+2*i+q, 's12')
    a(f'v_add_f32 v5, v{X0}, v{X0+1}')
    a(f'v_add_f32 v6, v{X0+2}, v{X0+3}')
    for j in range(4, 36, 2):
        a(f'v_add_f32 v5, v5, v{X0+j}')
        a(f'v_add_f32 v6, v6, v{X0+j+1}')
    a('v_add_f32 v5, v5, v6')
    row16_allsum(a, 5)
    a(f'v_mul_f32 v5, {hx(f32(1.0/576))}, v5')
    a('v_mov_b32 v6, 0')
    a('v_mov_b32 v7, 0')
    for j in range(0, 36, 2):
        a(f'v_sub_f32 v{P0}, v{X0+j}, v5')
        a(f'v_sub_f32 v{P0+1}, v{X0+j+1}, v5')
        a(f'v_fmac_f32 v6, v{P0}, v{P0}')
        a(f'v_fmac_f32 v7, v{P0+1}, v{P0+1}')
    a('v_add_f32 v6, v6, v7')
    row16_allsum(a, 6)
    a(f'v_mul_f32 v6, {hx(f32(1.0/576))}, v6')
    ln_scalars(a, 5, 6)
    for j in range(0, 36, 2):
        x0, x1, p = X0+j, X0+j+1, P0+j//2
        a(f'v_sub_f32 v{x0}, v{x0}, v5')
        a(f'v_sub_f32 v{x1}, v{x1}, v5')
        a(f'v_cvt_pk_bf16_f32 v{p}, v{x0}, v{x1}')
        unpack(a, x0, x1, p, 's12')
        a(f'v_mul_f32 v{x0}, v{x0}, v6')
        a(f'v_mul_f32 v{x1}, v{x1}, v6')
        a(f'v_cvt_pk_bf16_f32 v{p}, v{x0}, v{x1}')
        if j % 4 == 2:
            i = j // 4
            a(f'ds_write_b64 v4, v[{P0+2*i}:{P0+2*i+1}] offset:{128*i}')
    a(f"""
    v_and_b32 v5, 63, v0
    v_lshrrev_b32 v5, 2, v5            ; 4g + (i>>2)
    v_mul_u32_u24 v5, {LN1_STRIDE}, v5
    v_and_b32 v6, 3, v0
    v_lshl_add_u32 v5, v6, 3, v5
    v_lshrrev_b32 v6, 6, v0            ; wave
    v_lshl_add_u32 v5, v6, 5, v5
    v_lshl_add_u32 v7, v6, 4, v2       ; 16w + i
    v_lshlrev_b32 v7, 12, v7
    v_bfe_u32 v6, v0, 4, 2             ; g
    v_lshl_add_u32 v7, v6, 3, v7
    s_lshl_b32 s11, s10, 5
    s_add_u32 s11, s11, {N1T}
    v_add_u32 v7, s11, v7
    s_waitcnt lgkmcnt(0)
    s_barrier
    """)
    for j in range(9): a(f'ds_read_b64_tr_b16 v[{P0+2*j}:{P0+2*j+1}], v5 offset:{128*j}')
    for j in range(9):
        a(f's_waitcnt lgkmcnt({8-j})')
        a(f'global_store_dwordx2 v7, v[{P0+2*j}:{P0+2*j+1}], s[4:5]')
        if j < 8: a(f'v_add_u32 v7, {64*4096}, v7')
    a.branch('s_branch L_k1_end')

def role_kgen(a):
    a(f"""
    s_load_dwordx4 s[8:11], s[0:1], {A_ARE}
    s_load_dwordx4 s[12:15], s[0:1], {A_BRE}
    s_load_dwordx4 s[16:19], s[0:1], {A_CRE}
    s_load_dwordx2 s[20:21], s[0:1], {A_LDT}
    v_and_b32 v1, 31, v0               ; idx
    v_lshrrev_b32 v2, 6, v0            ; wave
    v_lshl_add_u32 v3, v2, 5, v1       ; mode
    s_lshl_b32 s22, s3, 8
    v_lshlrev_b32 v4, 1, v3
    v_add_u32 v4, s22, v4
    s_lshl_b32 s23, s3, 1
    v_mov_b32 v5, s23
    s_waitcnt lgkmcnt(0)
    global_load_ushort v16, v5, s[20:21]
    global_load_ushort v10, v4, s[8:9]
    global_load_ushort v11, v4, s[10:11]
    global_load_ushort v12, v4, s[12:13]
    global_load_ushort v13, v4, s[14:15]
    global_load_ushort v14, v4, s[16:17]
    global_load_ushort v15, v4, s[18:19]
    v_lshlrev_b32 v7, 3, v1
    v_cvt_f32_u32 v7, v7
    v_mov_b32 v6, v1                   ; idx<8
    v_lshlrev_b32 v17, 1, v1
    v_add_u32 v17, 240, v17            ; 256+2(idx-8)
    v_cmp_le_u32 vcc, 8, v1
    v_cndmask_b32 v6, v6, v17, vcc
    v_and_b32 v17, 2, v1
    v_lshlrev_b32 v17, 7, v17
    v_and_b32 v18, 1, v1
    v_lshl_add_u32 v17, v18, 2, v17
    v_add_u32 v17, 512, v17
    v_cmp_le_u32 vcc, 12, v1
    v_cndmask_b32 v6, v6, v17, vcc
    v_subrev_u32 v17, 12, v1
    v_lshlrev_b32 v17, 8, v17
    v_cmp_le_u32 vcc, 16, v1
    v_cndmask_b32 v6, v6, v17, vcc
    v_cmp_le_u32 vcc, 21, v1
    v_cndmask_b32 v6, v6, v1, vcc
    v_cvt_f32_u32 v6, v6
    v_bfe_u32 v19, v0, 5, 1            ; hi
    v_cvt_f32_u32 v8, v19
    v_mul_f32 v8, 0x3e800000, v8       ; 0.25*hi
    v_sub_f32 v9, 0, v8
    s_waitcnt vmcnt(0)
    """)
    for r in range(10, 17): a(f'v_lshlrev_b32 v{r}, 16, v{r}')
    a(f'v_mul_f32 v16, {hx(LOG2E)}, v16')
    a('v_exp_f32 v16, v16')
    rnd1(a, 16)
    a(f"""
    v_mul_f32 v20, v16, v10
    v_mul_f32 v21, v16, v11
    v_mul_f32 v12, v16, v12
    v_mul_f32 v13, v16, v13
    v_mul_f32 v20, {hx(LOG2E)}, v20
    v_mul_f32 v21, {hx(INV2PI)}, v21
    v_mul_f32 v22, v14, v12
    v_mul_f32 v23, v14, v13
    v_fma_f32 v22, -v15, v13, v22
    v_fma_f32 v23, v15, v12, v23
    v_lshlrev_b32 v4, 4, v3
    ds_write_b128 v4, v[20:23]
    v_lshlrev_b32 v4, 9, v2
    """)
    ACC = 32
    for r in range(16): a(f'v_mov_b32 v{ACC+r}, 0')
    a('s_mov_b32 s22, 8')
    a('s_waitcnt lgkmcnt(0)')
    a.label('L_kgen_loop')
    PR = 48
    for m in range(4): a(f'ds_read_b128 v[{PR+4*m}:{PR+4*m+3}], v4 offset:{16*m}')
    a('v_add_u32 v4, 64, v4')
    for pair in range(2):
        a(f's_waitcnt lgkmcnt({2-2*pair})')
        seq = []
        for m in (2*pair, 2*pair+1):
            al, be, cr, ci = [PR+4*m+q for q in range(4)]
            t = 10 + 8*(m & 1)
            seq.append([
                f'v_mul_f32 v{t}, v{al}, v6', f'v_mul_f32 v{t+1}, v{al}, v7',
                f'v_fma_f32 v{t+2}, v{be}, v6, v8', f'v_fma_f32 v{t+3}, v{be}, v7, v9',
                f'v_exp_f32 v{t}, v{t}', f'v_exp_f32 v{t+1}, v{t+1}',
                f'v_fract_f32 v{t+2}, v{t+2}', f'v_fract_f32 v{t+3}, v{t+3}',
                f'v_cos_f32 v{t+4}, v{t+2}', f'v_sin_f32 v{t+5}, v{t+2}', f'v_cos_f32 v{t+3}, v{t+3}',
                f'v_mul_f32 v{t+4}, v{cr}, v{t+4}', f'v_fma_f32 v{t+4}, -v{ci}, v{t+5}, v{t+4}',
                f'v_mul_f32 v{t+7}, v{t+1}, v{t+3}', f'v_mul_f32 v{t+6}, v{t}, v{t+4}',
                f'v_mfma_f32_32x32x2_f32 v[{ACC}:{ACC+15}], v{t+6}, v{t+7}, v[{ACC}:{ACC+15}]'])
        for x, y in zip(*seq): a(x); a(y)
    a('s_sub_u32 s22, s22, 1')
    a('s_cmp_lg_u32 s22, 0')
    a.branch('s_cbranch_scc1 L_kgen_loop', flush=False)
    TB = 2048
    a(f"""
    v_bfe_u32 v19, v0, 5, 1
    v_mul_u32_u24 v4, 3072, v2
    v_add_u32 v4, {TB}, v4
    v_lshl_add_u32 v10, v1, 5, v4
    v_lshl_add_u32 v10, v19, 4, v10    ; (8j+4hi)*4
    ; regs 4..7
    v_lshlrev_b32 v11, 4, v1
    v_add_u32 v11, 1024, v11           ; hi=0: (256+4j)*4
    v_add_u32 v12, 8, v11
    v_lshlrev_b32 v13, 3, v1
    v_add_u32 v14, {448*4}, v13
    v_add_u32 v13, {384*4}, v13
    v_cmp_eq_u32 vcc, 1, v19
    v_cndmask_b32 v11, v11, v13, vcc
    v_cndmask_b32 v12, v12, v14, vcc
    v_add_u32 v11, v11, v4
    v_add_u32 v12, v12, v4
    v_lshl_add_u32 v13, v19, 7, v1
    v_lshl_add_u32 v13, v13, 2, v4     ; (128hi+j)*4
    """)
    a(f'ds_write_b128 v10, v[{ACC}:{ACC+3}]')
    a(f'ds_write_b64 v11, v[{ACC+4}:{ACC+5}]')
    a(f'ds_write_b64 v12, v[{ACC+6}:{ACC+7}]')
    for r in range(4): a(f'ds_write_b32 v13, v{ACC+8+r} offset:{2048+128*r}')
    a(f"""
    v_lshlrev_b32 v4, 2, v0
    s_waitcnt lgkmcnt(0)
    s_barrier
    """)
    for q in range(3):
        for w in range(4): a(f'ds_read_b32 v{10+4*q+w}, v4 offset:{TB+3072*w+1024*q}')
    FT = TB + 4*3072
    G0 = 32
    a('v_lshlrev_b32 v5, 3, v0')
    for i in range(0, 8, 2):
        a(f'v_add_u32 v{G0+i}, {7-i}, v5')
        a(f'v_add_u32 v{G0+i+1}, {6-i}, v5')
        a(f'v_cvt_f32_u32 v24, v{G0+i}')
        a(f'v_cvt_f32_u32 v25, v{G0+i+1}')
        a('v_cvt_pk_bf16_f32 v24, v24, v25')
        a('v_lshrrev_b32 v25, 16, v24')
        a('v_and_b32 v24, 0xffff, v24')
        a(f'v_subrev_u32 v24, {0x4300-128}, v24')
        a(f'v_subrev_u32 v25, {0x4300-128}, v25')
        if i == 0: a('v_cmp_le_u32 vcc, 16, v0')
        a(f'v_cndmask_b32 v{G0+i}, v{G0+i}, v24, vcc')
        a(f'v_cndmask_b32 v{G0+i+1}, v{G0+i+1}, v25, vcc')
        a(f'v_lshlrev_b32 v{G0+i}, 1, v{G0+i}')
        a(f'v_lshlrev_b32 v{G0+i+1}, 1, v{G0+i+1}')
    a('v_lshlrev_b32 v4, 1, v0')
    a('s_waitcnt lgkmcnt(0)')
    for q in range(3):
        b = 10+4*q
        a(f'v_add_f32 v{b}, v{b}, v{b+1}')
        a(f'v_add_f32 v{b+2}, v{b+2}, v{b+3}')
        a(f'v_add_f32 v{b}, v{b}, v{b+2}')
        a(f'v_cvt_pk_bf16_f32 v{b}, v{b}, v{b}')
        a(f'ds_write_b16 v4, v{b} offset:{FT+512*q}')
    a(f"""
    s_lshl_b32 s22, s3, 12
    s_add_u32 s22, s22, {KT}
    v_lshlrev_b32 v5, 4, v0
    v_add_u32 v5, s22, v5
    s_waitcnt lgkmcnt(0)
    s_barrier
    """)
    for i in range(8):
        a(f'ds_read_u16 v{16+i}, v{G0+i} offset:{FT}')
    a('s_waitcnt lgkmcnt(0)')
    for i in range(4): a(f'v_lshl_or_b32 v{12+i}, v{17+2*i}, 16, v{16+2*i}')
    a('global_store_dwordx4 v5, v[12:15], s[4:5]')
    a.branch('s_branch L_k1_end')

def transpose8(a, R, O, s_lo, s_hi, emit_store):
    for j in range(8):
        for p in range(4):
            a(f'v_perm_b32 v{O+4*j+p}, v{R+4*(2*p+1)+j//2}, v{R+4*(2*p)+j//2}, {s_hi if j & 1 else s_lo}')
        emit_store(j)

def role_repack(a, end):
    R, O = 8, 40
    a(f"""
    v_lshrrev_b32 v1, 6, v0
    v_and_b32 v2, 63, v0               ; lane
    s_load_dwordx4 s[8:11], s[0:1], {B_WG}
    s_load_dwordx2 s[12:13], s[0:1], {B_WD}
    v_readfirstlane_b32 s14, v1
    s_lshl_b32 s15, s3, 2
    s_add_u32 s14, s14, s15            ; task
    s_mov_b32 s20, 0x05040100
    s_mov_b32 s21, 0x07060302
    v_lshrrev_b32 v3, 4, v2            ; g
    s_cmp_ge_u32 s14, 1296
    """)
    a.branch(f's_cbranch_scc1 {end}_wd')
    a(f"""
    s_cmp_ge_u32 s14, 648
    s_cselect_b32 s15, 1, 0            ; mat
    s_mul_i32 s16, s15, 648
    s_sub_u32 s14, s14, s16
    s_mul_i32 s16, s14, 1821
    s_lshr_b32 s16, s16, 16            ; s = rem/36
    s_mul_i32 s17, s16, 36
    s_sub_u32 s17, s14, s17            ; G
    s_mul_i32 s18, s16, {32*9216}
    s_lshl_b32 s19, s17, 8
    s_add_u32 s18, s18, s19
    v_mul_u32_u24 v4, {8*9216}, v3
    v_and_b32 v5, 15, v2
    v_lshl_add_u32 v4, v5, 4, v4
    v_add_u32 v4, s18, v4
    s_waitcnt lgkmcnt(0)
    s_cmp_eq_u32 s15, 1
    s_cselect_b32 s8, s10, s8
    s_cselect_b32 s9, s11, s9
    """)
    for i in range(8):
        a(f'global_load_dwordx4 v[{R+4*i}:{R+4*i+3}], v4, s[8:9]')
        if i < 7: a('v_add_u32 v4, 9216, v4')
    a(f"""
    s_mul_i32 s18, s17, {8*36}
    s_lshl_b32 s19, s16, 1
    s_add_u32 s18, s18, s19
    s_add_u32 s18, s18, s15
    s_lshl_b32 s18, s18, 10
    s_add_u32 s18, s18, {WGU}
    v_lshlrev_b32 v5, 4, v2
    v_add_u32 v5, s18, v5
    s_waitcnt vmcnt(0)
    """)
    def st(j):
        a(f'global_store_dwordx4 v5, v[{O+4*j}:{O+4*j+3}], s[4:5]')
        if j < 7: a('v_add_u32 v5, 36864, v5')
    transpose8(a, R, O, 's20', 's21', st)
    a.branch(f's_branch {end}')
    a.label(f'{end}_wd')
    a(f"""
    s_sub_u32 s14, s14, 1296
    s_mul_i32 s16, s14, 7282
    s_lshr_b32 s16, s16, 16            ; sp = t2/9
    s_mul_i32 s17, s16, 9
    s_sub_u32 s17, s14, s17            ; cgp
    v_and_b32 v5, 7, v2                ; c8
    v_bfe_u32 v6, v2, 3, 1             ; e
    s_lshr_b32 s18, s16, 1
    s_lshl_b32 s18, s18, 7
    s_and_b32 s19, s16, 1
    s_lshl_b32 s19, s19, 2
    s_add_u32 s18, s18, s19
    v_lshlrev_b32 v4, 5, v3
    v_lshl_add_u32 v4, v6, 1, v4
    v_add_u32 v4, s18, v4
    v_mul_u32_u24 v4, 1152, v4
    v_lshl_add_u32 v4, v5, 4, v4
    s_lshl_b32 s18, s17, 7
    v_add_u32 v4, s18, v4
    s_waitcnt lgkmcnt(0)
    """)
    for i in range(4):
        a(f'global_load_dwordx4 v[{R+4*i}:{R+4*i+3}], v4, s[12:13]')
        a(f'global_load_dwordx4 v[{R+4*(i+4)}:{R+4*(i+4)+3}], v4, s[12:13] offset:1152')
        if i < 3: a(f'v_add_u32 v4, {8*1152}, v4')
    a(f"""
    ; dtile = 4cgp + (c8>>1); cb = dtile/9; tt = dtile%9
    s_lshl_b32 s18, s17, 2
    v_lshrrev_b32 v7, 1, v5
    v_add_u32 v7, s18, v7
    v_mul_u32_u24 v1, 57, v7
    v_lshrrev_b32 v1, 9, v1            ; cb
    v_mul_u32_u24 v1, {144*9-9}, v1
    v_add_u32 v7, v7, v1
    s_lshl_b32 s18, s16, 1
    v_add_u32 v6, s18, v6              ; s2
    v_mul_u32_u24 v6, 9, v6
    v_add_u32 v7, v7, v6
    v_lshlrev_b32 v7, 10, v7
    v_lshl_add_u32 v7, v3, 8, v7       ; + g*256
    v_and_b32 v5, 1, v5
    v_lshl_add_u32 v7, v5, 7, v7       ; + (c8&1)*128
    v_add_u32 v7, {WD}, v7
    s_waitcnt vmcnt(0)
    """)
    transpose8(a, R, O, 's20', 's21', lambda j: a(f'global_store_dwordx4 v7, v[{O+4*j}:{O+4*j+3}], s[4:5] offset:{16*j}'))
    a.branch(f's_branch {end}')

def k1():
    a = Asm()
    b1, b2, b3, tot = NG_GEMV, NG_GEMV+NG_LN1, NG_GEMV+NG_LN1+NG_KGEN, NG_GEMV+NG_LN1+NG_KGEN+NG_REP
    a(f"""
    s_cmp_ge_u32 s2, {tot}
    s_cbranch_scc1 L_k1_end
    s_load_dwordx2 s[4:5], s[0:1], {D_WS}
    s_sub_u32 s3, s2, {b3}
    s_cmp_ge_u32 s2, {b3}
    s_cbranch_scc1 L_k1_rep
    s_sub_u32 s3, s2, {b2}
    s_cmp_ge_u32 s2, {b2}
    s_cbranch_scc1 L_k1_kgen
    s_sub_u32 s3, s2, {b1}
    s_cmp_ge_u32 s2, {b1}
    s_cbranch_scc1 L_k1_ln1
    s_mov_b32 s3, s2
    """)
    role_gemv(a)
    a.label('L_k1_ln1'); role_ln1(a)
    a.label('L_k1_kgen'); role_kgen(a)
    a.label('L_k1_rep'); role_repack(a, 'L_k1_end')
    a.label('L_k1_end')
    return ('prep_kernel', a.text(), dict(vgpr=72, sgpr=32, accum=72), tot, 256, 16*LN1_STRIDE)

def k2():
    a = Asm()
    KL = 0
    HL = 4352
    YL = HL + 5376
    lds = YL + 4352
    a(f"""
    s_cmp_ge_u32 s2, 576
    s_cbranch_scc1 L_k2_end
    s_load_dwordx2 s[4:5], s[0:1], {D_WS}
    s_load_dwordx2 s[6:7], s[0:1], {A_DSK}
    s_and_b32 s3, s2, 7
    s_mul_i32 s3, s3, 72
    s_lshr_b32 s8, s2, 3
    s_add_u32 s3, s3, s8               ; d
    s_lshl_b32 s8, s3, 12
    v_lshlrev_b32 v1, 4, v0
    v_add_u32 v2, s8, v1
    v_add_u32 v3, {KT}, v2
    v_add_u32 v2, {N1T}, v2
    v_and_b32 v4, 63, v0
    v_min_u32 v5, 23, v4
    v_lshrrev_b32 v6, 2, v5
    v_and_b32 v5, 3, v5
    v_mul_u32_u24 v6, {576*4}, v6
    v_mul_u32_u24 v5, {3456*4}, v5
    s_lshl_b32 s9, s3, 2
    v_add3_u32 v5, v5, v6, s9
    s_lshl_b32 s9, s3, 1
    v_mov_b32 v6, s9
    s_waitcnt lgkmcnt(0)
    global_load_dword v7, v5, s[4:5] offset:{MODP}
    global_load_dwordx4 v[8:11], v2, s[4:5]
    global_load_dwordx4 v[12:15], v3, s[4:5]
    global_load_ushort v16, v6, s[6:7]
    v_mov_b32 v20, 0
    v_mov_b32 v21, 0
    v_mov_b32 v22, 0
    v_mov_b32 v23, 0
    v_and_b32 v17, 15, v0
    v_lshlrev_b32 v17, 4, v17
    ds_write_b128 v17, v[20:23] offset:{KL}
    v_mov_b32 v18, {HL}
    ds_write_b128 v18, v[20:23]
    v_lshrrev_b32 v18, 4, v0           ; n
    v_bfe_u32 v19, v0, 2, 2            ; g
    v_lshl_add_u32 v24, v19, 4, v18
    v_mul_u32_u24 v24, 84, v24
    v_and_b32 v25, 3, v0
    v_lshl_add_u32 v24, v25, 4, v24
    v_add_u32 v24, {HL+16}, v24
    v_lshrrev_b32 v26, 2, v0
    v_add_u32 v26, 1, v26
    v_lshrrev_b32 v27, 2, v26
    v_and_b32 v26, 3, v26
    v_lshl_add_u32 v26, v26, 4, v27
    v_mul_u32_u24 v26, 84, v26
    v_add_u32 v26, {HL}, v26
    s_mov_b32 s12, 0xffff0000
    s_waitcnt vmcnt(3)
    v_add_f32_dpp v7, v7, v7 quad_perm:[1,0,3,2] row_mask:0xf bank_mask:0xf
    v_add_f32_dpp v7, v7, v7 quad_perm:[2,3,0,1] row_mask:0xf bank_mask:0xf
    """)
    rnd1(a, 7)
    a('v_add_f32 v28, 1.0, v7')
    rnd1(a, 28)
    a(f"""
    v_readlane_b32 s13, v7, 0          ; sa
    v_readlane_b32 s14, v28, 4         ; 1+ca
    v_readlane_b32 s15, v7, 8          ; ga
    v_cmp_eq_u32 vcc, 16, v0
    v_cndmask_b32 v7, v7, v28, vcc
    v_mov_b32 v29, {576*4}
    v_cndmask_b32 v29, v29, v20, vcc
    v_mov_b32 v30, {2*576*4}
    v_cmp_eq_u32 vcc, 20, v0
    v_cndmask_b32 v29, v29, v30, vcc
    s_lshl_b32 s9, s3, 2
    s_add_u32 s9, s9, {MODF}
    v_add_u32 v29, s9, v29
    v_readfirstlane_b32 s16, v0
    s_waitcnt vmcnt(0)
    """)
    a(f'ds_write_b128 v1, v[12:15] offset:{KL+256}')
    H = 32
    for q in range(4):
        unpack(a, H+2*q, H+2*q+1, 8+q, 's12')
        a(f'v_mul_f32 v{H+2*q}, s14, v{H+2*q}')
        a(f'v_mul_f32 v{H+2*q+1}, s14, v{H+2*q+1}')
        a(f'v_cvt_pk_bf16_f32 v{8+q}, v{H+2*q}, v{H+2*q+1}')
        unpack(a, H+2*q, H+2*q+1, 8+q, 's12')
        a(f'v_add_f32 v{H+2*q}, s13, v{H+2*q}')
        a(f'v_add_f32 v{H+2*q+1}, s13, v{H+2*q+1}')
        a(f'v_cvt_pk_bf16_f32 v{8+q}, v{H+2*q}, v{H+2*q+1}')
        unpack(a, H+2*q, H+2*q+1, 8+q, 's12')
    a(f"""
    ds_write2_b32 v24, v8, v9 offset0:0 offset1:1
    ds_write2_b32 v24, v10, v11 offset0:2 offset1:3
    v_cmp_eq_u32 s[18:19], 3, v25
    v_cmp_ne_u32 vcc, 255, v0
    s_and_b64 vcc, vcc, s[18:19]
    s_and_saveexec_b64 s[18:19], vcc
    ds_write2_b32 v26, v8, v9 offset0:0 offset1:1
    ds_write2_b32 v26, v10, v11 offset0:2 offset1:3
    s_mov_b64 exec, s[18:19]
    v_lshlrev_b32 v16, 16, v16         ; Dskip
    v_lshrrev_b32 v17, 6, v0           ; rho
    v_mul_u32_u24 v18, 84, v4
    v_lshl_add_u32 v18, v17, 2, v18
    v_add_u32 v18, {HL}, v18
    v_and_b32 v19, 15, v0
    v_bfe_u32 v24, v0, 4, 2
    v_lshlrev_b32 v25, 2, v24
    v_sub_u32 v25, v19, v25
    v_add_u32 v25, 13, v25
    v_lshlrev_b32 v25, 4, v25
    v_mul_u32_u24 v26, 68, v19
    v_lshl_add_u32 v26, v24, 4, v26
    v_add_u32 v26, v26, v17
    v_lshlrev_b32 v26, 2, v26
    v_cmp_ne_u32 vcc, 8, v19
    v_cndmask_b32 v27, 0, 1.0, vcc
    s_waitcnt lgkmcnt(0)
    s_barrier
    """)
    V0, E, O, P = 41, 42, 58, 74
    E = 42
    a(f'ds_read_b32 v{V0}, v18')
    for q in range(8): a(f'ds_read2_b32 v[{E+2*q}:{E+2*q+1}], v18 offset0:{1+2*q} offset1:{2+2*q}')
    AF = 90
    NAF = 8
    Z = 122
    steps = [(t, u) for t in range(15, -1, -1) for u in range(4)]
    def aload(k):
        t, u = steps[k]
        r = AF + 4*(k % NAF)
        a(f'ds_read_b128 v[{r}:{r+3}], v25 offset:{KL + 256*t + 16*(3-u)}')
    PD = 6
    for k in range(PD): aload(k)
    a(f's_waitcnt lgkmcnt({PD})')
    for j in range(16):
        a(f'v_alignbit_b32 v{O+j}, v{E+j}, v{E+j-1}, 16')
    for j in range(16):
        a(f'v_mov_b32 v{P+j}, v{O+j}')
    for j in range(16):
        a(f'v_mov_b32_dpp v{P+j}, v{E+j} row_shr:8 row_mask:0xf bank_mask:0xc')
    pend = None
    zi = 0
    prev = None
    merge = []
    for k, (t, u) in enumerate(steps):
        if k + PD < len(steps): aload(k + PD)
        outstanding = min(PD, len(steps) - 1 - k)
        a(f's_waitcnt lgkmcnt({outstanding})')
        r = AF + 4*(k % NAF)
        z = Z + 8*(zi % 3)
        if t >= 8:
            c = '0' if u == 0 else f'v[{z}:{z+3}]'
            a(f'v_mfma_f32_16x16x32_bf16 v[{z}:{z+3}], v[{r}:{r+3}], v[{P+4*u}:{P+4*u+3}], {c}')
        else:
            for (zz, B) in ((z, O), (z+4, E)):
                c = '0' if u == 0 else f'v[{zz}:{zz+3}]'
                a(f'v_mfma_f32_16x16x32_bf16 v[{zz}:{zz+3}], v[{r}:{r+3}], v[{B+4*u}:{B+4*u+3}], {c}')
        if u == 2 and merge:
            for x in merge: a(x)
            merge = []
        if u == 3:
            if prev is None: merge = []
            elif t >= 8:
                merge = [f'v_fmac_f32_dpp v{z+q}, v{prev+q}, v27 row_shr:1 row_mask:0xf bank_mask:0xf bound_ctrl:0' for q in range(4)]
            elif t == 7:
                merge = []
                for q in range(4):
                    merge.append(f'v_mov_b32_dpp v{prev+4+q}, v{prev+q} row_shl:8 row_mask:0xf bank_mask:0xf bound_ctrl:0')
                for q in range(4):
                    merge.append(f'v_mov_b32_dpp v{prev+q}, v20 row_shr:1 row_mask:0xf bank_mask:0xc bound_ctrl:0')
                for q in range(8):
                    merge.append(f'v_add_f32_dpp v{z+q}, v{prev+q}, v{z+q} row_shr:1 row_mask:0xf bank_mask:0xf bound_ctrl:0')
            else:
                merge = [f'v_add_f32_dpp v{z+q}, v{prev+q}, v{z+q} row_shr:1 row_mask:0xf bank_mask:0xf bound_ctrl:0' for q in range(8)]
            prev = z
            zi += 1
    for x in merge: a(x)
    for q in range(4):
        a(f'v_cvt_pk_bf16_f32 v{8+q}, v{prev+q}, v{prev+4+q}')
        a(f'ds_write_b32 v26, v{8+q} offset:{YL+16*q}')
    a(f"""
    v_lshrrev_b32 v18, 4, v0
    v_lshl_add_u32 v18, v18, 4, v1     ; 16t + 16*(t>>4)
    v_add_u32 v2, {GT-N1T}, v2
    s_waitcnt lgkmcnt(0)
    s_barrier
    ds_read_b128 v[8:11], v18 offset:{YL}
    """)
    for q in range(8): a(f'v_mul_f32 v{H+q}, v16, v{H+q}')
    for q in range(4):
        a(f'v_cvt_pk_bf16_f32 v{12+q}, v{H+2*q}, v{H+2*q+1}')
        unpack(a, H+2*q, H+2*q+1, 12+q, 's12')
    a('s_waitcnt lgkmcnt(0)')
    for q in range(4):
        unpack(a, 20, 21, 8+q, 's12')
        a(f'v_add_f32 v20, v20, v{H+2*q}')
        a(f'v_add_f32 v21, v21, v{H+2*q+1}')
        a(f'v_cvt_pk_bf16_f32 v{8+q}, v20, v21')
        unpack(a, 20, 21, 8+q, 's12')
        a('v_mul_f32 v20, s15, v20')
        a('v_mul_f32 v21, s15, v21')
        a(f'v_cvt_pk_bf16_f32 v{8+q}, v20, v21')
    a('global_store_dwordx4 v2, v[8:11], s[4:5]')
    a('s_cmp_lg_u32 s16, 0')
    a.branch('s_cbranch_scc1 L_k2_end')
    a(f"""
    s_mov_b64 exec, {hex((1<<12)|(1<<16)|(1<<20))}
    global_store_dword v29, v7, s[4:5]
    """)
    a.label('L_k2_end')
    return ('conv_kernel', a.text(), dict(vgpr=146, sgpr=32, accum=148), 576, 256, lds)

def k3():
    a = Asm()
    RED = 576*32
    lds = RED + 9*64*8
    a(f"""
    s_cmp_ge_u32 s2, 128
    s_cbranch_scc1 L_k3_end
    s_load_dwordx2 s[4:5], s[0:1], {D_WS}
    s_load_dwordx2 s[6:7], s[0:1], {A_U}
    s_and_b32 s10, s2, 7
    s_lshr_b32 s11, s2, 3
    s_lshl_b32 s10, s10, 4
    s_add_u32 s10, s10, s11
    s_lshl_b32 s11, s10, 5
    s_add_u32 s11, s11, {GT}
    v_lshlrev_b32 v1, 12, v0
    v_add_u32 v1, s11, v1
    v_and_b32 v2, 15, v0               ; n
    v_bfe_u32 v3, v0, 4, 2             ; g
    v_lshrrev_b32 v4, 6, v0            ; wave
    v_lshlrev_b32 v5, 6, v4
    v_lshl_add_u32 v5, v3, 3, v5       ; d0 = 64w+8g
    s_lshl_b32 s11, s10, 4
    v_add_u32 v6, s11, v2
    v_mul_u32_u24 v6, 1152, v6
    v_lshl_add_u32 v6, v5, 1, v6       ; x offset
    v_lshlrev_b32 v7, 2, v5
    v_add_u32 v7, {MODF}, v7
    s_waitcnt lgkmcnt(0)
    global_load_dwordx4 v[8:11], v1, s[4:5]
    global_load_dwordx4 v[12:15], v1, s[4:5] offset:16
    global_load_dwordx4 v[16:19], v6, s[6:7]
    global_load_dwordx4 v[20:23], v6, s[6:7] offset:64
    """)
    C1, SB = 48, 64
    for e in range(2):
        for hf in range(2):
            a(f'global_load_dwordx4 v[{C1+8*e+4*hf}:{C1+8*e+4*hf+3}], v7, s[4:5] offset:{128*e+16*hf}')
            a(f'global_load_dwordx4 v[{SB+8*e+4*hf}:{SB+8*e+4*hf+3}], v7, s[4:5] offset:{2304+128*e+16*hf}')
    a(f"""
    v_lshlrev_b32 v1, 5, v0
    v_lshrrev_b32 v24, 2, v2
    v_add_u32 v24, v24, v5
    v_lshlrev_b32 v24, 5, v24
    v_and_b32 v25, 3, v0
    v_lshl_add_u32 v24, v25, 3, v24
    s_mov_b32 s12, 0xffff0000
    s_waitcnt vmcnt(10)
    ds_write_b128 v1, v[8:11]
    ds_write_b128 v1, v[12:15] offset:16
    s_waitcnt lgkmcnt(0)
    ds_read_b64_tr_b16 v[8:9], v24
    ds_read_b64_tr_b16 v[10:11], v24 offset:128
    ds_read_b64_tr_b16 v[12:13], v24 offset:1024
    ds_read_b64_tr_b16 v[14:15], v24 offset:1152
    s_waitcnt vmcnt(8) lgkmcnt(0)
    """)
    X = 28
    for q in range(8):
        unpack(a, X+2*q, X+2*q+1, 16+q, 's12')
        unpack(a, 26, 27, 8+q, 's12')
        a(f'v_add_f32 v{X+2*q}, v{X+2*q}, v26')
        a(f'v_add_f32 v{X+2*q+1}, v{X+2*q+1}, v27')
        a(f'v_cvt_pk_bf16_f32 v{16+q}, v{X+2*q}, v{X+2*q+1}')
        unpack(a, X+2*q, X+2*q+1, 16+q, 's12')
    a(f"""
    v_add_u32 v6, {X1}, v6
    global_store_dwordx4 v6, v[16:19], s[4:5]
    global_store_dwordx4 v6, v[20:23], s[4:5] offset:64
    v_add_f32 v8, v{X}, v{X+1}
    v_mul_f32 v9, v{X}, v{X}
    v_fmac_f32 v9, v{X+1}, v{X+1}
    """)
    for q in range(2, 16):
        a(f'v_add_f32 v8, v8, v{X+q}')
        a(f'v_fmac_f32 v9, v{X+q}, v{X+q}')
    a(f"""
    v_lshlrev_b32 v1, 3, v0
    ds_write_b64 v1, v[8:9] offset:{RED}
    v_and_b32 v1, 63, v0
    v_lshlrev_b32 v1, 3, v1
    s_waitcnt lgkmcnt(0)
    s_barrier
    """)
    R = 80
    for w in range(9): a(f'ds_read_b64 v[{R+2*w}:{R+2*w+1}], v1 offset:{RED+512*w}')
    a(f"""
    s_mul_i32 s11, s10, {18*1024}
    s_add_u32 s11, s11, {H2F}
    v_lshlrev_b32 v1, 1, v1
    v_lshl_add_u32 v1, v4, 11, v1
    v_add_u32 v1, s11, v1
    s_waitcnt lgkmcnt(0)
    """)
    a(f'v_add_f32 v8, v{R}, v{R+2}')
    a(f'v_add_f32 v9, v{R+1}, v{R+3}')
    for w in range(2, 9):
        a(f'v_add_f32 v8, v8, v{R+2*w}')
        a(f'v_add_f32 v9, v9, v{R+2*w+1}')
    for op in ('v_permlane32_swap_b32', 'v_permlane16_swap_b32'):
        a('v_mov_b32 v10, v8')
        a('v_mov_b32 v11, v9')
        a(f'{op} v8, v10')
        a(f'{op} v9, v11')
        a('v_add_f32 v8, v8, v10')
        a('v_add_f32 v9, v9, v11')
    a(f"""
    v_mul_f32 v8, {hx(f32(1.0/576))}, v8
    v_mul_f32 v9, {hx(f32(1.0/576))}, v9
    v_fma_f32 v9, -v8, v8, v9
    v_max_f32 v9, 0, v9
    """)
    ln_scalars(a, 8, 9)
    a('s_waitcnt vmcnt(2)')
    O = 12
    for q in range(8):
        x0, x1, p = X+2*q, X+2*q+1, O+q
        a(f'v_sub_f32 v{x0}, v{x0}, v8')
        a(f'v_sub_f32 v{x1}, v{x1}, v8')
        a(f'v_cvt_pk_bf16_f32 v26, v{x0}, v{x1}')
        unpack(a, x0, x1, 26, 's12')
        a(f'v_mul_f32 v{x0}, v{x0}, v9')
        a(f'v_mul_f32 v{x1}, v{x1}, v9')
        a(f'v_cvt_pk_bf16_f32 v26, v{x0}, v{x1}')
        unpack(a, x0, x1, 26, 's12')
        a(f'v_mul_f32 v{x0}, v{x0}, v{C1+2*q}')
        a(f'v_mul_f32 v{x1}, v{x1}, v{C1+2*q+1}')
        a(f'v_cvt_pk_bf16_f32 v26, v{x0}, v{x1}')
        unpack(a, x0, x1, 26, 's12')
        a(f'v_add_f32 v{x0}, v{x0}, v{SB+2*q}')
        a(f'v_add_f32 v{x1}, v{x1}, v{SB+2*q+1}')
        a(f'v_cvt_pk_bf16_f32 v{R+q}, v{x0}, v{x1}')
    a(f'global_store_dwordx4 v1, v[{R}:{R+3}], s[4:5]')
    a(f'global_store_dwordx4 v1, v[{R+4}:{R+7}], s[4:5] offset:1024')
    a.label('L_k3_end')
    return ('ln2_kernel', a.text(), dict(vgpr=98, sgpr=32, accum=100), 128, 576, lds)

def build(kernels, path, header=''):
    out = header
    for (name, body, regs, grid, block, lds) in kernels:
        out += f'; @launch kernel={name} grid=({grid},1,1) block=({block},1,1) lds={lds}\n'
    out += '.amdgcn_target "amdgcn-amd-amdhsa--gfx950"\n'
    seen = set()
    for (name, body, regs, grid, block, lds) in kernels:
        if name in seen: continue
        seen.add(name)
        out += kernel_text(name, body, **regs)
    open(path, 'w').write(out)

if __name__ == '__main__':
    build([k1(), k2(), k3()], 'part1.s')
```

```python
from asmlib import Asm
from gen import *

class VQ:
    def __init__(self, a): self.a, self.q = a, []
    def issue(self, tag, text):
        self.a(text); self.q.append(tag)
    def count_after(self, tag):
        i = len(self.q) - 1 - self.q[::-1].index(tag)
        return len(self.q) - 1 - i
    def wait(self, tags, extra=''):
        n = min(self.count_after(t) for t in tags)
        assert n <= 63, n
        self.a(f's_waitcnt vmcnt({n}){extra}')

def areg(idx):
    if idx < 64: return f'a[{4*idx}:{4*idx+3}]'
    b = AV + 4*(idx-64)
    return f'v[{b}:{b+3}]'
AV = 16

def k4(opt={}):
    exact = opt.get('exact_epi', True)
    stmod = opt.get('st', '')
    PD = opt.get('PD', 5)
    a = Asm(); vq = VQ(a)
    ACC = 48
    BF, NBF = 176, 10
    PK = 216
    T = 232
    a(f"""
    s_cmp_ge_u32 s2, 256
    s_cbranch_scc1 L_k4_end
    s_load_dwordx2 s[4:5], s[0:1], {D_WS}
    v_lshrrev_b32 v1, 6, v0
    v_and_b32 v13, 63, v0
    v_readfirstlane_b32 s6, v1         ; wave
    s_and_b32 s7, s2, 1
    s_lshl_b32 s7, s7, 2
    s_bfe_u32 s3, s2, 0x20003
    s_add_u32 s7, s7, s3               ; rb
    s_bfe_u32 s3, s2, 0x20001
    s_lshl_b32 s3, s3, 3
    s_lshr_b32 s20, s2, 5
    s_add_u32 s3, s3, s20              ; cb
    s_lshl_b32 s20, s7, 4
    s_lshl_b32 s21, s6, 2
    s_add_u32 s20, s20, s21
    v_lshlrev_b32 v1, 4, v13
    v_add_u32 v2, 18432, v1
    v_add_u32 v3, {2*18432}, v1
    v_add_u32 v4, {3*18432}, v1
    s_lshl_b32 s22, s6, 10             ; wave*1024
    v_add_u32 v5, s22, v1
    s_mul_i32 s23, s20, 18432
    s_add_u32 s23, s23, {H2F}
    s_mul_i32 s24, s3, {9*36864}
    s_add_u32 s24, s24, {WGU}
    s_and_b32 s25, s3, 1               ; parity
    s_mul_i32 s26, s25, 36864
    s_xor_b32 s27, s25, 1
    s_mul_i32 s27, s27, {8*36864}
    s_mov_b32 s29, 4096
    s_mov_b32 s30, 8192
    s_mov_b32 s31, 12288
    s_mov_b32 s32, 16384
    s_waitcnt lgkmcnt(0)
    s_add_u32 s8, s4, s23
    s_addc_u32 s9, s5, 0
    s_mov_b32 s10, {4*18432}
    s_mov_b32 s11, 0x20000
    s_add_u32 s12, s4, s24
    s_addc_u32 s13, s5, 0
    s_mov_b32 s14, {9*36864}
    s_mov_b32 s15, 0x20000
    """)
    RING = 12
    def quad_src(tile, q):
        return ('s27', q*4096) if tile == 8 else ('s26', tile*36864 + q*4096)
    groups = [[(t, i) for t in range(3)] for i in range(9)]
    for t in range(3, 9):
        for c in range(3): groups.append([(t, 3*c + e) for e in range(3)])
    qpos = {}
    for gi, g in enumerate(groups):
        for e, tq in enumerate(g): qpos[tq] = (gi, (gi % RING)*12288 + e*4096)
    def dma(tq):
        sreg, off = quad_src(*tq)
        return [f's_add_u32 m0, s22, {qpos[tq][1]}', f's_add_u32 s28, {sreg}, {off}',
                ('V', ('Q', tq), 'buffer_load_dwordx4 v5, s[12:15], s28 offen lds')]
    def aload(s, rt):
        so = '0' if s < 4 else f's{28 + s//4}'
        return [('V', ('A', s, rt), f'buffer_load_dwordx4 {areg(4*s+rt)}, v{1+rt}, s[8:11], {so} offen offset:{1024*(s%4)}')]
    def emit(item):
        for x in item:
            if isinstance(x, tuple): vq.issue(x[1], x[2])
            else: a(x)
    def group_items(gi):
        it = [dma(tq) for tq in groups[gi]]
        if gi < 9:
            for s in (2*gi, 2*gi+1):
                for rt in range(4): it.append(aload(s, rt))
        return it
    AHEAD = 5
    for gi in range(AHEAD):
        for it in group_items(gi): emit(it)
    a(f"""
    v_mov_b32 v6, v1
    v_add_u32 v7, 49152, v1
    v_add_u32 v8, 98304, v1
    s_mul_i32 s23, s20, {144*1024}
    s_mul_i32 s24, s3, 9
    s_add_u32 s24, s24, s25
    s_lshr_b32 s24, s24, 1             ; s2_0
    s_lshl_b32 s24, s24, 10
    s_add_u32 s23, s23, {HF}
    s_add_u32 s16, s4, s23
    s_addc_u32 s17, s5, 0
    s_mov_b32 s18, {4*144*1024}
    s_mov_b32 s19, 0x20000
    v_add_u32 v9, s24, v1
    v_add_u32 v10, {144*1024}, v9
    v_add_u32 v11, {2*144*1024}, v9
    v_add_u32 v12, {3*144*1024}, v9
    s_cmp_eq_u32 s25, 0
    s_cselect_b32 s33, s29, {hx(-1016)}
    s_mov_b32 s34, 0xffff0000
    """)
    frags = []
    for s in range(18):
        for t in range(3):
            for m in range(2): frags.append((t, s, m))
    for t in range(3, 9):
        for s in range(18):
            for m in range(2): frags.append((t, s, m))
    def faddr(f):
        t, s, m = f
        gi, off = qpos[(t, s//2)]
        return gi, off + (2*(s % 2) + m)*1024
    accset = {0: 0, 1: 1, 2: 2, 3: 3, 4: 0, 5: 1, 6: 2, 7: 3, 8: 0}
    pub = {gi: gi for gi in range(9)}
    for gi in range(9, 27, 3): pub[gi] = gi + 2
    memq, valq = [], []
    issued_groups = AHEAD
    def epilogue(tile):
        base = ACC + 32*accset[tile]
        half = tile & 1
        out = []
        for rt in range(4):
            g, u, p = base + 4*rt, base + 16 + 4*rt, PK + 4*rt + 2*half
            t = T + 8*(rt & 1)
            if exact:
                out += [f'v_cvt_pk_bf16_f32 v{t}, v{g}, v{g+1}', f'v_cvt_pk_bf16_f32 v{t+1}, v{g+2}, v{g+3}',
                        f'v_cvt_pk_bf16_f32 v{t+2}, v{u}, v{u+1}', f'v_cvt_pk_bf16_f32 v{t+3}, v{u+2}, v{u+3}',
                        f'v_pk_max_i16 v{t}, v{t}, 0', f'v_pk_max_i16 v{t+1}, v{t+1}, 0']
                for h in range(2):
                    out += [f'v_lshlrev_b32 v{t+4}, 16, v{t+h}', f'v_lshlrev_b32 v{t+5}, 16, v{t+2+h}',
                            f'v_and_b32 v{t+6}, s34, v{t+h}', f'v_and_b32 v{t+7}, s34, v{t+2+h}',
                            f'v_mul_f32 v{t+4}, v{t+4}, v{t+5}', f'v_mul_f32 v{t+6}, v{t+6}, v{t+7}',
                            f'v_cvt_pk_bf16_f32 v{p+h}, v{t+4}, v{t+6}']
            else:
                for q in range(4): out += [f'v_max_f32 v{t+q}, 0, v{g+q}']
                for q in range(4): out += [f'v_mul_f32 v{t+q}, v{t+q}, v{u+q}']
                for h in range(2): out += [f'v_cvt_pk_bf16_f32 v{p+h}, v{t+2*h}, v{t+2*h+1}']
            if tile == 8:
                out += [f'v_add_u32 v{9+rt}, s33, v{9+rt}',
                        ('V', ('S', tile, rt), f'buffer_store_dwordx2 v[{p}:{p+1}], v{9+rt}, s[16:19], 0 offen {stmod}')]
            elif half:
                out += [('V', ('S', tile, rt), f'buffer_store_dwordx4 v[{p-2}:{p+1}], v{9+rt}, s[16:19], 0 offen offset:{1024*(tile//2)} {stmod}')]
        return out
    published = -1
    def read(k):
        nonlocal published, issued_groups
        gi, off = faddr(frags[k])
        if gi > published:
            assert gi in pub
            while memq and any(('Q', tq) not in vq.q for g2 in range(gi, pub[gi]+1) for tq in groups[g2]):
                emit(memq.pop(0))
            vq.wait([('Q', tq) for g2 in range(gi, pub[gi]+1) for tq in groups[g2]])
            a('s_barrier')
            published = pub[gi]
            lim = min(26, gi + RING - 2, (gi + AHEAD) if gi < 9 else gi + 8)
            while issued_groups <= lim:
                memq.extend(group_items(issued_groups)); issued_groups += 1
        r = BF + 4*(k % NBF)
        a(f'ds_read_b128 v[{r}:{r+3}], v{6 + off//49152} offset:{off % 49152}')
    for k in range(PD): read(k)
    waitedA = set()
    for k, (t, s, m) in enumerate(frags):
        if (t, s, m) == (3, 0, 0): valq += epilogue(0) + epilogue(1)
        if (t, s, m) == (4, 0, 0): valq += epilogue(2) + epilogue(3)
        if t >= 5 and s == 0 and m == 0: valq += epilogue(t-1)
        if s not in waitedA:
            vq.wait([('A', s, rt) for rt in range(4)]); waitedA.add(s)
        if k + PD < len(frags): read(k + PD)
        a(f's_waitcnt lgkmcnt({min(PD, len(frags)-1-k)})')
        r = BF + 4*(k % NBF)
        for rt in range(4):
            d = ACC + 32*accset[t] + 16*m + 4*rt
            c = '0' if s == 0 else f'v[{d}:{d+3}]'
            a(f'v_mfma_f32_16x16x32_bf16 v[{d}:{d+3}], v[{r}:{r+3}], {areg(4*s+rt)}, {c}')
            if rt == 1 and memq: emit(memq.pop(0))
            elif rt != 3 or True:
                skip = (s == 0 and m == 0)
                n = 2 if rt in (0, 2) else 1
                if not skip:
                    for _ in range(n):
                        if valq: emit([valq.pop(0)])
        if s == 17 and m == 1 and t >= 3:
            assert not valq, (t, len(valq))
    assert not memq
    for x in epilogue(8): emit([x])
    a.label('L_k4_end')
    return ('gemm1_kernel', a.text(), dict(vgpr=256, sgpr=40, accum=256, agpr=256), 256, 256, RING*12288)

def k5(opt={}):
    PD = opt.get('PD', 5)
    a = Asm(); vq = VQ(a)
    ACC = 48
    BF, NBF = 192, 10
    a(f"""
    s_cmp_ge_u32 s2, 256
    s_cbranch_scc1 L_k5_end
    s_load_dwordx2 s[4:5], s[0:1], {D_WS}
    v_lshrrev_b32 v1, 6, v0
    v_and_b32 v13, 63, v0
    v_readfirstlane_b32 s6, v1         ; wave
    s_bfe_u32 s21, s2, 0x20001         ; q
    s_and_b32 s7, s2, 1
    s_lshl_b32 s7, s7, 3
    s_bfe_u32 s3, s2, 0x30003
    s_add_u32 s7, s7, s3
    s_lshr_b32 s3, s2, 6               ; cb
    s_and_b32 s35, s6, 1               ; wm
    s_lshr_b32 s36, s6, 1              ; wk
    s_lshl_b32 s20, s7, 3
    s_lshl_b32 s23, s35, 2
    s_add_u32 s20, s20, s23
    v_lshlrev_b32 v14, 4, v13
    s_lshl_b32 s23, s36, 1
    s_mul_i32 s24, s23, {144*1024}
    s_xor_b32 s23, s23, 2
    s_mul_i32 s25, s23, {144*1024}
    v_add_u32 v1, s24, v14
    v_add_u32 v2, {144*1024}, v1
    v_add_u32 v3, s25, v14
    v_add_u32 v4, {144*1024}, v3
    s_lshl_b32 s22, s6, 10             ; wave*1024
    v_add_u32 v5, s22, v14
    s_mul_i32 s23, s20, 144
    s_mul_i32 s24, s21, 36
    s_add_u32 s23, s23, s24
    s_add_u32 s23, s23, s36
    s_lshl_b32 s23, s23, 10
    s_add_u32 s23, s23, {HF}
    s_mul_i32 s25, s3, 144
    s_add_u32 s24, s24, s25
    s_mul_i32 s24, s24, 9216
    s_add_u32 s24, s24, {WD}
    s_waitcnt lgkmcnt(0)
    s_add_u32 s8, s4, s23
    s_addc_u32 s9, s5, 0
    s_mov_b32 s10, {4*144*1024}
    s_mov_b32 s11, 0x20000
    s_add_u32 s12, s4, s24
    s_addc_u32 s13, s5, 0
    s_mov_b32 s14, {36*9216}
    s_mov_b32 s15, 0x20000
    """)
    RQ = 36
    def dma(q):
        return [f's_add_u32 m0, s22, {(q % RQ)*4096}', f's_mov_b32 s28, {q*4096}',
                ('V', ('Q', q), 'buffer_load_dwordx4 v5, s[12:15], s28 offen lds')]
    def aload(r, rt):
        pre = [f's_mov_b32 s29, {(r//2)*4096}'] if (rt == 0) else []
        return pre + [('V', ('A', r, rt), f'buffer_load_dwordx4 {areg(4*r+rt)}, v{1+rt}, s[8:11], s29 offen offset:{2048*(r%2)}')]
    def emit(item):
        for x in item:
            if isinstance(x, tuple): vq.issue(x[1], x[2])
            else: a(x)
    lastq = lambda r: (18*r + 17)//4
    def round_items(r):
        q0 = lastq(r-1) + 1 if r else 0
        return [dma(q) for q in range(q0, lastq(r)+1)] + [aload(r, rt) for rt in range(4)]
    AHEAD = opt.get('AHEAD', 6)
    for r in range(AHEAD):
        for it in round_items(r): emit(it)
    a(f"""
    s_mul_i32 s23, s36, 9216
    v_add_u32 v6, s23, v14
    v_add_u32 v7, {3*18432}, v6
    v_add_u32 v8, {6*18432}, v6
    """)
    frags = [(r, tt) for r in range(18) for tt in range(9)]
    memq = []
    issued = AHEAD
    published = -1
    def read(k):
        nonlocal published, issued
        r, tt = frags[k]
        if r > published:
            while memq and ('Q', lastq(r)) not in vq.q: emit(memq.pop(0))
            vq.wait([('Q', lastq(r))])
            a('s_barrier')
            published = r
            while issued < 18 and issued <= r + AHEAD and lastq(issued) < (18*(r-1))//4 + RQ:
                memq.extend(round_items(issued)); issued += 1
        off = (r % 8)*18432 + tt*1024
        rg = BF + 4*(k % NBF)
        a(f'ds_read_b128 v[{rg}:{rg+3}], v{6 + off//(3*18432)} offset:{off % (3*18432)}')
    for k in range(PD): read(k)
    for k, (r, tt) in enumerate(frags):
        if tt == 0:
            while ('A', r, 3) not in vq.q: emit(memq.pop(0))
            vq.wait([('A', r, rt) for rt in range(4)])
        if k + PD < len(frags): read(k + PD)
        a(f's_waitcnt lgkmcnt({min(PD, len(frags)-1-k)})')
        rg = BF + 4*(k % NBF)
        for rt in range(4):
            d = ACC + 36*rt + 4*tt
            c = '0' if r == 0 else f'v[{d}:{d+3}]'
            a(f'v_mfma_f32_16x16x32_bf16 v[{d}:{d+3}], v[{rg}:{rg+3}], {areg(4*r+rt)}, {c}')
            if rt == 1 and memq: emit(memq.pop(0))
    assert not memq and issued == 18
    a(f"""
    s_barrier
    s_mul_i32 s23, s6, 18432
    v_add_u32 v6, s23, v14
    s_xor_b32 s23, s6, 2
    s_mul_i32 s23, s23, 18432
    v_add_u32 v7, s23, v14
    """)
    for i in range(18):
        d = ACC + 72 + 4*i
        a(f'ds_write_b128 v6, v[{d}:{d+3}] offset:{1024*i}')
    a(f"""
    s_lshl_b32 s23, s36, 1
    s_add_u32 s23, s23, s20
    s_lshl_b32 s23, s23, 2
    s_add_u32 s23, s23, s3
    s_mul_i32 s23, s23, 9216
    s_mul_i32 s24, s21, 4718592
    s_add_u32 s23, s23, s24
    s_add_u32 s23, s23, {PART}
    s_add_u32 s16, s4, s23
    s_addc_u32 s17, s5, 0
    s_mov_b32 s18, {2*36864}
    s_mov_b32 s19, 0x20000
    s_waitcnt lgkmcnt(0)
    s_barrier
    """)
    for i in range(18):
        d = ACC + 72 + 4*i
        a(f'ds_read_b128 v[{d}:{d+3}], v7 offset:{1024*i}')
    for i in range(18):
        a(f's_waitcnt lgkmcnt({min(15, 17-i)})')
        d = ACC + 4*i
        a(f'v_pk_add_f32 v[{d}:{d+1}], v[{d}:{d+1}], v[{d+72}:{d+73}]')
        a(f'v_pk_add_f32 v[{d+2}:{d+3}], v[{d+2}:{d+3}], v[{d+74}:{d+75}]')
        off = (i//9)*36864 + (i % 9)*1024
        a(f's_mov_b32 s28, {off}')
        a(f'buffer_store_dwordx4 v[{d}:{d+3}], v14, s[16:19], s28 offen')
    a.label('L_k5_end')
    return ('gemm2_kernel', a.text(), dict(vgpr=256, sgpr=40, accum=256, agpr=256), 256, 256, 147456)

def k6():
    a = Asm()
    a(f"""
    s_cmp_ge_u32 s2, 1152
    s_cbranch_scc1 L_k6_end
    s_load_dwordx2 s[4:5], s[0:1], {D_WS}
    s_load_dwordx2 s[6:7], s[0:1], {D_OUT}
    v_lshrrev_b32 v1, 6, v0
    s_lshl_b32 s3, s2, 2
    v_add_u32 v1, s3, v1
    v_mul_u32_u24 v2, 1821, v1
    v_lshrrev_b32 v2, 16, v2
    v_mul_u32_u24 v3, 36, v2
    v_cmp_lt_u32 vcc, v1, v3
    v_subb_co_u32 v2, vcc, v2, 0, vcc
    v_mul_u32_u24 v3, 36, v2
    v_sub_u32 v3, v1, v3               ; dtile
    s_lshl_b32 s3, s2, 12
    s_add_u32 s3, s3, {PART}
    v_lshlrev_b32 v4, 4, v0
    v_add_u32 v4, s3, v4
    v_add_u32 v5, 4718592, v4
    v_add_u32 v6, {2*4718592}, v4
    v_add_u32 v7, {3*4718592}, v4
    v_and_b32 v8, 15, v0
    v_lshl_add_u32 v8, v2, 4, v8       ; row
    v_bfe_u32 v9, v0, 4, 2
    v_lshlrev_b32 v9, 2, v9
    v_lshl_add_u32 v9, v3, 4, v9       ; d
    v_mul_u32_u24 v8, 1152, v8
    v_lshl_add_u32 v8, v9, 1, v8
    v_add_u32 v10, {X1}, v8
    v_lshlrev_b32 v9, 2, v9
    v_add_u32 v9, {MODF+2*2304}, v9
    s_waitcnt lgkmcnt(0)
    global_load_dwordx4 v[12:15], v4, s[4:5]
    global_load_dwordx4 v[16:19], v5, s[4:5]
    global_load_dwordx4 v[20:23], v6, s[4:5]
    global_load_dwordx4 v[24:27], v7, s[4:5]
    global_load_dwordx2 v[28:29], v10, s[4:5]
    global_load_dwordx4 v[32:35], v9, s[4:5]
    s_mov_b32 s12, 0xffff0000
    s_waitcnt vmcnt(2)
    """)
    for q in range(4):
        a(f'v_add_f32 v{12+q}, v{12+q}, v{16+q}')
        a(f'v_add_f32 v{20+q}, v{20+q}, v{24+q}')
    for q in range(4): a(f'v_add_f32 v{12+q}, v{12+q}, v{20+q}')
    a('s_waitcnt vmcnt(0)')
    for h in range(2):
        x0, x1 = 12+2*h, 13+2*h
        a(f'v_cvt_pk_bf16_f32 v16, v{x0}, v{x1}')
        unpack(a, x0, x1, 16, 's12')
        a(f'v_mul_f32 v{x0}, v{x0}, v{32+2*h}')
        a(f'v_mul_f32 v{x1}, v{x1}, v{33+2*h}')
        a(f'v_cvt_pk_bf16_f32 v16, v{x0}, v{x1}')
        unpack(a, x0, x1, 16, 's12')
        unpack(a, 17, 18, 28+h, 's12')
        a(f'v_add_f32 v{x0}, v{x0}, v17')
        a(f'v_add_f32 v{x1}, v{x1}, v18')
        a(f'v_cvt_pk_bf16_f32 v{30+h}, v{x0}, v{x1}')
    a('global_store_dwordx2 v8, v[30:31], s[6:7]')
    a.label('L_k6_end')
    return ('final_kernel', a.text(), dict(vgpr=36, sgpr=32, accum=36), 1152, 256, 0)

HEADER = open('adaLN_cond__ssm_conv_s4__glu_gated_reglu__prompt.s.ref').read().split('; Override')[0] if __name__ == '__main__' else ''
if __name__ == '__main__':
    build([k1(), k2(), k3(), k4(), k5(), k6()], 'v1.s', HEADER)
```

```python
from asmlib import Asm
from gen import *
from front3 import P, WS, SPIN
from gemm import VQ
GFL = 0x260000
FA, FH, FX = GFL, GFL + 0x4000, GFL + 0x8000
MODF = 0x18000
AV = 16
def areg(idx, half=None):
    b, k = (4*idx, 'a') if idx < 64 else (AV + 4*(idx-64), 'v')
    if half is None: return f'{k}[{b}:{b+3}]'
    return f'{k}[{b+2*half}:{b+2*half+1}]'

def kg(opt={}):
    PD = opt.get('PD', 5)
    a = Asm(); vq = VQ(a)
    slow = []
    mk_ = opt.get('marks', ['ld', 'pub', 'poll', 'p2'])
    def mark(n):
        if n in mk_: a.raw(f';MARK{mk_.index(n)}')
    ACC, PK, BF, NBF, T = 48, 176, 192, 8, 232
    RING = 147456
    SG, SRED, SM = RING, RING + 9216, 32*4096
    a(f"""
    s_load_dwordx16 s[44:59], s[0:1], 0
    s_load_dwordx16 s[60:75], s[0:1], 64
    s_load_dwordx4 s[76:79], s[0:1], 128
    s_cmp_ge_u32 s2, 256
    s_cbranch_scc1 L_g_end
    v_lshrrev_b32 v1, 6, v0
    v_and_b32 v13, 63, v0
    v_readfirstlane_b32 s36, v1        ; wave
    s_and_b32 s7, s2, 1
    s_lshl_b32 s7, s7, 2
    s_bfe_u32 s3, s2, 0x20003
    s_add_u32 s7, s7, s3               ; rb
    s_bfe_u32 s37, s2, 0x20001         ; q
    s_lshl_b32 s3, s37, 3
    s_lshr_b32 s4, s2, 5
    s_add_u32 s3, s3, s4               ; cb
    s_and_b32 s35, s3, 1               ; parity
    v_lshlrev_b32 v1, 4, v13           ; lane*16
    s_mul_i32 s4, s3, {9*36864}
    s_add_u32 s4, s4, {WGU}
    s_mul_i32 s33, s35, 36864
    s_xor_b32 s34, s35, 1
    s_mul_i32 s34, s34, {8*36864}
    s_lshl_b32 s5, s7, 5
    s_add_u32 s5, s5, s3
    s_cmp_eq_u32 s36, 3
    s_cbranch_scc1 L_g_w3
    s_mul_i32 s6, s36, 3072
    s_mul_i32 s28, s5, 9216
    s_add_u32 s6, s6, s28
    s_add_u32 s6, s6, {GT}
    v_add_u32 v2, s6, v1               ; G address
    v_and_b32 v3, 7, v0                ; l
    v_lshrrev_b32 v4, 3, v13           ; c
    s_lshl_b32 s28, s5, 3
    v_add_u32 v5, s28, v3
    v_mul_u32_u24 v5, 1152, v5
    v_lshl_add_u32 v5, v4, 4, v5
    s_mul_i32 s28, s36, 384
    v_add_u32 v5, s28, v5              ; x offset
    v_lshrrev_b32 v6, 4, v13
    v_mul_u32_u24 v6, 2304, v6
    v_and_b32 v7, 15, v0
    v_lshl_add_u32 v6, v7, 4, v6
    s_mul_i32 s28, s36, 768
    s_add_u32 s28, s28, {MODF}
    v_add_u32 v6, s28, v6
    s_mul_i32 s38, s36, 3072
    s_waitcnt lgkmcnt(0)
    """)
    mark('ka')
    a(f's_add_u32 m0, s38, {SG}')
    for j in range(3): a(f'global_load_lds_dwordx4 v2, {WS} offset:{1024*j}')
    XP = 48
    for j in range(3): a(f'global_load_dwordx4 v[{XP+4*j}:{XP+4*j+3}], v5, {P(A_U)} offset:{128*j} {opt.get("xnt", "nt")}')
    for j in range(3):
        a(f's_add_u32 m0, s38, {SM + 1024*j}')
        a(f'global_load_lds_dwordx4 v6, {WS}')
        if j < 2: a('v_add_u32 v6, 256, v6')
    a(f"""
    v_lshrrev_b32 v8, 4, v13
    v_lshlrev_b32 v8, 8, v8
    v_bfe_u32 v9, v0, 1, 1
    v_lshl_add_u32 v8, v9, 7, v8
    v_bfe_u32 v9, v0, 2, 2
    v_lshl_add_u32 v8, v9, 4, v8
    v_and_b32 v9, 1, v0
    v_lshl_add_u32 v8, v9, 3, v8
    s_add_u32 s28, s38, {SG}
    v_add_u32 v8, s28, v8
    v_lshlrev_b32 v9, 5, v4
    s_add_u32 s28, s38, {SM}
    v_add_u32 v9, s28, v9
    ; H2F address
    v_lshrrev_b32 v10, 2, v4
    v_lshlrev_b32 v10, 10, v10
    v_and_b32 v11, 3, v4
    v_lshl_add_u32 v10, v11, 8, v10
    v_lshl_add_u32 v10, v3, 4, v10
    s_lshr_b32 s28, s5, 1
    s_mul_i32 s28, s28, 18432
    s_lshl_b32 s6, s35, 7
    s_add_u32 s28, s28, s6
    s_mul_i32 s6, s36, 6144
    s_add_u32 s28, s28, s6
    s_add_u32 s28, s28, {H2F}
    v_add_u32 v10, s28, v10
    v_add_u32 v5, {X1}, v5
    v_lshlrev_b32 v11, 3, v3
    s_lshl_b32 s28, s36, 6
    v_add_u32 v12, s28, v11
    s_mov_b32 s39, 0xffff0000
    s_waitcnt vmcnt(6)
    """)
    mark('g')
    GP, X, G, M = 60, 72, 96, 120
    for j in range(3):
        for h in range(2): a(f'ds_read_b64_tr_b16 v[{GP+4*j+2*h}:{GP+4*j+2*h+1}], v8 offset:{1024*j+64*h}')
    a('s_waitcnt vmcnt(3)')
    mark('x')
    for i in range(12): unpack(a, X+2*i, X+2*i+1, XP+i, 's39')
    a('s_waitcnt vmcnt(0)')
    for arr in range(3):
        for j in range(3):
            for h in range(2): a(f'ds_read_b128 v[{M+24*arr+8*j+4*h}:{M+24*arr+8*j+4*h+3}], v9 offset:{1024*j+256*arr+16*h}')
        if arr == 0:
            a('s_waitcnt lgkmcnt(6)')
            for i in range(12): unpack(a, G+2*i, G+2*i+1, GP+i, 's39')
    mark('ld')
    a('s_waitcnt lgkmcnt(12)')
    for i in range(12): a(f'v_pk_fma_f32 v[{X+2*i}:{X+2*i+1}], v[{G+2*i}:{G+2*i+1}], v[{M+2*i}:{M+2*i+1}], v[{X+2*i}:{X+2*i+1}]')
    for i in range(12):
        x = X+2*i; s_, q_ = 200+2*(i & 1), 204+2*(i & 1)
        if i < 2: a(f'v_pk_mul_f32 v[{q_}:{q_+1}], v[{x}:{x+1}], v[{x}:{x+1}]')
        else:
            a(f'v_pk_fma_f32 v[{q_}:{q_+1}], v[{x}:{x+1}], v[{x}:{x+1}], v[{q_}:{q_+1}]')
            s0 = x-4 if i < 4 else s_
            a(f'v_pk_add_f32 v[{s_}:{s_+1}], v[{s0}:{s0+1}], v[{x}:{x+1}]')
    a("""
    v_pk_add_f32 v[200:201], v[200:201], v[202:203]
    v_pk_add_f32 v[204:205], v[204:205], v[206:207]
    v_add_f32 v200, v200, v201
    v_add_f32 v201, v204, v205
    v_add_f32_dpp v200, v200, v200 row_ror:8 row_mask:0xf bank_mask:0xf
    v_add_f32_dpp v201, v201, v201 row_ror:8 row_mask:0xf bank_mask:0xf
    """)
    for op in ('v_permlane32_swap_b32', 'v_permlane16_swap_b32'):
        a('v_mov_b32 v202, v200')
        a('v_mov_b32 v203, v201')
        a(f'{op} v200, v202')
        a(f'{op} v201, v203')
        a('v_pk_add_f32 v[200:201], v[200:201], v[202:203]')
    a(f'v_add_u32 v12, {SRED}, v12')
    a(f'v_add_u32 v11, {SRED}, v11')
    a('ds_write_b64 v12, v[200:201]')
    for i in range(12): a(f'v_cvt_pk_bf16_f32 v{XP+i}, v{X+2*i}, v{X+2*i+1}')
    a('s_waitcnt lgkmcnt(0)')
    a('s_barrier')
    mark('st')
    for w in range(3): a(f'ds_read_b64 v[{200+2*w}:{201+2*w}], v11 offset:{64*w}')
    a(f"""
    s_waitcnt lgkmcnt(0)
    v_pk_add_f32 v[200:201], v[200:201], v[202:203]
    v_pk_add_f32 v[200:201], v[200:201], v[204:205]
    v_mul_f32 v200, {hx(f32(1.0/576))}, v200
    v_mul_f32 v202, {hx(f32(1.0/576))}, v201
    v_fma_f32 v202, -v200, v200, v202
    v_max_f32 v202, 0, v202
    v_add_f32 v202, {hx(f32(1e-5))}, v202
    v_rsq_f32 v202, v202
    v_mul_f32 v204, -v200, v202
    """)
    for j in range(3):
        xs = [X+8*j+2*q for q in range(4)]
        for x in xs: a(f'v_pk_fma_f32 v[{x}:{x+1}], v[{x}:{x+1}], v[202:203], v[204:205] op_sel_hi:[1,0,0]')
        for x in xs: a(f'v_pk_fma_f32 v[{x}:{x+1}], v[{x}:{x+1}], v[{x-X+M+48}:{x-X+M+49}], v[{x-X+M+24}:{x-X+M+25}]')
        for q, x in enumerate(xs): a(f'v_cvt_pk_bf16_f32 v{GP+4*j+q}, v{x}, v{x+1}')
        a(f'global_store_dwordx4 v10, v[{GP+4*j}:{GP+4*j+3}], {WS} {"offset:2048 " if j == 1 else ""}sc1')
        if j == 1: a('v_add_u32 v10, 4096, v10')
    for j in range(3): a(f'global_store_dwordx4 v5, v[{XP+4*j}:{XP+4*j+3}], {WS} offset:{128*j} sc1')
    mark('sto')
    a('s_waitcnt vmcnt(0)')
    mark('dr')
    a.branch('s_branch L_g_pub')
    a.label('L_g_w3')
    a('s_getpc_b64 s[40:41]')
    a.raw('L_g_pc:')
    a(f"""
    v_lshlrev_b32 v2, 3, v1
    s_mov_b32 s6, L_code_end-L_g_pc-4
    """)
    def codepf():
        for i in range(5):
            a('v_min_u32 v3, s6, v2')
            a(f'global_load_dword v{4+i}, v3, s[40:41]')
            if i < 4: a('v_add_u32 v2, 8192, v2')
    if opt.get('cpf', 0) == 0: codepf()
    a(f"""
    s_waitcnt lgkmcnt(0)
    s_add_u32 s12, s78, s4
    s_addc_u32 s13, s79, 0
    s_mov_b32 s14, {9*36864}
    s_mov_b32 s15, 0x20000
    """)
    for _ in range(opt.get('w3nop', 2)): a('s_load_dword s6, s[0:1], 0'); a('s_waitcnt lgkmcnt(0)')
    NPRE = opt.get('npre', 32)
    def w3touch():
        half = opt.get('w3half', 1)
        a(f"""
        s_lshr_b32 s6, s2, 3
        s_mul_i32 s6, s6, {36*1152}
        s_mul_i32 s28, s37, {1152*1152}
        s_add_u32 s6, s6, s28
        s_and_b32 s28, s2, {half}
        s_mul_i32 s28, s28, {18*1152}
        s_add_u32 s6, s6, s28
        v_lshlrev_b32 v2, 3, v1
        """)
        n = 162 if half else 324
        for i in range((n + 63)//64):
            a(f'v_min_u32 v3, {(n-1)*128}, v2')
            a('v_add_u32 v3, s6, v3')
            a(f'global_load_dword v{4+i}, v3, {P(B_WD)}')
            a('v_add_u32 v2, 8192, v2')
    if opt.get('w3t') == 1: w3touch()
    def prefill(q0, q1):
        for qi in range(q0, q1):
            tile, qq = qi % 4, qi // 4
            a(f's_mov_b32 m0, {qi*4096}')
            a(f's_add_u32 s28, s33, {tile*36864 + qq*4096}')
            for pc in range(4): a(f'buffer_load_dwordx4 v1, s[12:15], s28 offen offset:{1024*pc} lds')
            if opt.get('prew', 63) < 60: a(f's_waitcnt vmcnt({opt.get("prew", 63)})')
    n1 = opt.get('pre1', 8)
    prefill(0, n1)
    a('s_barrier')
    n2 = opt.get('pre2', 16)
    if opt.get('cpf', 0) == 1: codepf()
    if opt.get('w3t') == 2: w3touch()
    prefill(n1, n2)
    a.label('L_g_pub')
    a(f"""
    s_barrier
    s_lshl_b32 s6, s5, 6
    s_add_u32 s6, s6, {FA}
    v_mov_b32 v2, s6
    v_mov_b32 v3, 1
    s_cmp_lg_u32 s36, 0
    s_cbranch_scc1 L_g_pub2
    s_mov_b64 exec, 1
    global_store_dword v2, v3, {WS} sc1
    s_mov_b64 exec, -1
    """)
    a.label('L_g_pub2')
    mark('pub')
    a(f"""
    v_add_u32 v240, {FH-FA}, v2
    s_lshl_b32 s42, s7, 4
    s_lshl_b32 s6, s36, 2
    s_add_u32 s42, s42, s6             ; first row tile of this wave (GEMM1)
    s_mul_i32 s6, s42, 18432
    s_add_u32 s6, s6, {H2F}
    s_add_u32 s8, s78, s6
    s_addc_u32 s9, s79, 0
    s_mov_b32 s10, {4*18432}
    s_mov_b32 s11, 0x20000
    s_add_u32 s12, s78, s4
    s_addc_u32 s13, s79, 0
    s_mov_b32 s14, {9*36864}
    s_mov_b32 s15, 0x20000
    s_mul_i32 s6, s42, {144*1024}
    s_add_u32 s6, s6, {HF}
    s_add_u32 s16, s78, s6
    s_addc_u32 s17, s79, 0
    s_mov_b32 s18, {4*144*1024}
    s_mov_b32 s19, 0x20000
    v_add_u32 v2, 18432, v1
    v_add_u32 v3, {2*18432}, v1
    v_add_u32 v4, {3*18432}, v1
    s_lshl_b32 s38, s36, 10            ; wave*1024
    v_add_u32 v5, s38, v1
    v_add_u32 v7, 49152, v1
    v_add_u32 v8, 98304, v1
    s_mul_i32 s6, s3, 9
    s_add_u32 s6, s6, s35
    s_lshr_b32 s6, s6, 1
    s_lshl_b32 s6, s6, 10              ; s2_0*1024
    v_add_u32 v9, s6, v1
    v_add_u32 v10, {144*1024}, v9
    v_add_u32 v11, {2*144*1024}, v9
    v_add_u32 v12, {3*144*1024}, v9
    s_mov_b32 s29, 4096
    s_mov_b32 s30, 8192
    s_mov_b32 s31, 12288
    s_mov_b32 s32, 16384
    s_cmp_eq_u32 s35, 0
    s_cselect_b32 s6, s29, -512
    v_lshlrev_b32 v241, 3, v13
    v_subrev_u32 v241, s6, v241        ; subtract this from the pair store offsets
    s_and_b32 s40, s2, 1
    s_lshl_b32 s40, s40, 3
    s_bfe_u32 s6, s2, 0x30003
    s_add_u32 s40, s40, s6             ; rb2
    s_lshr_b32 s41, s2, 6              ; cb2
    s_and_b32 s0, s36, 1               ; wm
    s_lshr_b32 s1, s36, 1              ; wk
    s_lshl_b32 s43, s40, 3
    s_lshl_b32 s6, s0, 2
    s_add_u32 s43, s43, s6             ; first row tile of this wave (GEMM2)
    s_mul_i32 s6, s43, 144
    s_mul_i32 s28, s37, 36
    s_add_u32 s6, s6, s28
    s_lshl_b32 s6, s6, 10
    s_add_u32 s6, s6, {HF}
    s_add_u32 s20, s78, s6
    s_addc_u32 s21, s79, 0
    s_mov_b32 s22, {4*144*1024}
    s_mov_b32 s23, 0x20000
    s_mul_i32 s6, s37, {1152*1152}
    s_mul_i32 s28, s41, 288
    s_add_u32 s6, s6, s28
    s_add_u32 s24, s{44+B_WD//4}, s6
    s_addc_u32 s25, s{45+B_WD//4}, 0
    s_sub_u32 s26, {4608*1152}, s6
    s_mov_b32 s27, 0x20000
    s_lshl_b32 s6, s1, 1
    s_mul_i32 s28, s6, {144*1024}
    v_add_u32 v242, s28, v1
    v_add_u32 v243, {144*1024}, v242
    s_xor_b32 s6, s6, 2
    s_mul_i32 s28, s6, {144*1024}
    v_add_u32 v244, s28, v1
    v_add_u32 v245, {144*1024}, v244
    s_mul_i32 s44, s1, 5120            ; A offset of wk in pair rounds
    s_mul_i32 s45, s1, 9216            ; ... in single rounds (also slab offset)
    s_mul_i32 s46, s1, 9
    s_mul_i32 s6, s0, 5
    s_add_u32 s46, s46, s6
    s_mul_i32 s46, s46, {32*1152}      ; slab source offset, pair rounds
    s_mul_i32 s47, s36, {9*32*1152}
    s_mul_i32 s48, s36, 9216
    """)
    WO = [246] + list(range(224, 232))
    for j in range(9):
        a(f'v_add_u32 v247, {64*j}, v13')
        a(f'v_mul_u32_u24 v248, 3641, v247')
        a(f'v_lshrrev_b32 v248, 16, v248')
        a(f'v_mul_u32_u24 v248, 864, v248')
        a(f'v_lshl_add_u32 v{WO[j]}, v247, 4, v248')
    a(f"""
    v_lshrrev_b32 v250, 2, v13
    v_mul_u32_u24 v250, 288, v250
    v_and_b32 v251, 3, v13
    v_lshl_add_u32 v250, v251, 3, v250
    v_add_u32 v250, s45, v250
    v_add_u32 v251, 49152, v250
    v_add_u32 v252, 98304, v250
    s_lshr_b32 s6, s40, 1
    s_lshl_b32 s6, s6, 5
    s_lshl_b32 s28, s37, 3
    s_add_u32 s6, s6, s28
    v_and_b32 v253, 7, v13
    v_add_u32 v253, s6, v253
    v_lshlrev_b32 v253, 6, v253
    v_add_u32 v253, {FH}, v253
    v_and_b32 v14, 31, v13
    s_lshl_b32 s6, s7, 5
    v_add_u32 v14, s6, v14
    v_lshlrev_b32 v14, 6, v14
    v_add_u32 v14, {FA}, v14
    s_mov_b32 s49, {SPIN}
    s_cmp_eq_u32 s36, 3
    s_cbranch_scc0 L_g_poll0
    """)
    prefill(n2, NPRE)
    a.label('L_g_poll0')
    if opt.get('cpf') == 3:
        a('s_getpc_b64 s[58:59]')
        a.raw('L_g_pc2:')
        a('v_lshlrev_b32 v247, 7, v0')
        a('s_mov_b32 s6, L_code_end-L_g_pc2-4')
        a('v_min_u32 v247, s6, v247')
        a('global_load_dword v248, v247, s[58:59]')
    a.label('L_g_poll')
    a(f"""
    global_load_dword v15, v14, {WS} sc1
    s_sub_u32 s49, s49, 1
    s_waitcnt vmcnt(0)
    v_cmp_eq_u32 vcc, 0, v15
    s_cmp_eq_u32 s49, 0
    """)
    a.branch('s_cbranch_scc1 L_g_poll_ok')
    a.branch('s_cbranch_vccz L_g_poll_ok')
    a(f's_sleep {opt.get("sleep", 1)}')
    a.branch('s_branch L_g_poll')
    a.label('L_g_poll_ok')
    mark('poll')

    def emit(item):
        for x in item:
            if isinstance(x, tuple):
                kind = x[1][0] + ('2' if x[1][0] == 'U' and x[1][1] >= 81 else '')
                if kind in opt.get('drop', ()): dropped.add(x[1]); vq.q.insert(0, x[1])
                else: vq.issue(x[1], x[2])
            else: a(x)
    dropped = set()
    STG = opt.get('stagger', 2)
    order1 = [(t, s) for s in range(18-STG) for t in range(4)] + [(t, s) for t in range(4) for s in range(18-STG, 18)]
    order1 += [(t, s) for t in (4, 5) for s in range(18)]
    SB = opt.get('staggerB', 4)
    order1 += [(t, s) for s in range(18-SB) for t in (6, 7, 8)] + [(t, s) for t in (6, 7, 8) for s in range(18-SB, 18)]
    quads = [(t, i) for i in range(9) for t in range(4)] + [(t, i) for t in (4, 5) for i in range(9)] + [(t, i) for i in range(9) for t in (6, 7, 8)]
    units = []
    qunit = {}
    for qi, (t, i) in enumerate(quads):
        sreg, off = ('s34', i*4096) if t == 8 else ('s33', t*36864 + i*4096)
        pos = (qi % 36)*4096
        units.append(dict(off=pos, size=4096, pre=qi < NPRE,
                          items=[[f's_add_u32 m0, s38, {pos}', f's_add_u32 s28, {sreg}, {off}', ('V', ('U', qi), 'buffer_load_dwordx4 v5, s[12:15], s28 offen lds')]]))
        qunit[(t, i)] = qi
    for D in range(9):
        ui = len(units); pos = ((81 + 9*D) % 36)*4096
        items = []
        for j in range(9):
            it = [f's_add_u32 m0, s48, {pos + 1024*j}']
            if j == 0: it += [f's_add_u32 s50, s46, {(9*((2*D) & 3) + (D >> 1))*32*1152}' if D < 8 else f's_add_u32 s50, s47, {4*32*1152}']
            it += [('V', ('U', ui), f'buffer_load_dwordx4 v{WO[j]}, s[24:27], s50 offen {opt.get("wdmod", "")} lds')]
            items.append(it)
        units.append(dict(off=pos, size=36864, pre=False, items=items))
    accset = {t: t % 4 for t in range(9)}
    frags = []
    for (t, s) in order1:
        for m in range(2):
            qi = qunit[(t, s//2)]
            off = units[qi]['off'] + (2*(s % 2) + m)*1024
            frags.append(dict(ph=1, t=t, s=s, m=m, unit=qi, reads=[('b128', (1, 7, 8)[off//49152], off % 49152)],
                              mf=[(ACC + 32*accset[t] + 16*m + 4*rt, 4*s+rt, s == 0) for rt in range(4)]))
    n1f = len(frags)
    groups = [ACC + 32*st + 4*i for st in (1, 2, 3, 0) for i in range(8)] + [PK + 4*i for i in range(4)]
    acc2 = lambda rho, tt: groups[4*tt + rho]
    for r in range(18):
        for tt in range(9):
            ui = 81 + r//2
            off = units[ui]['off'] + (r & 1)*18432 + 32*tt
            frags.append(dict(ph=2, r=r, tt=tt, unit=ui, reads=[('tr', (250, 251, 252)[off//49152], off % 49152 + 4608*h) for h in range(2)],
                              mf=[(acc2(rho, tt), 4*r+rho, r == 0) for rho in range(4)]))
    for k, f in enumerate(frags):
        u = units[f['unit']]; u.setdefault('first', k); u['last'] = k
    fidx = {(f['t'], f['s'], f['m']): k for k, f in enumerate(frags[:n1f])}
    tstart = lambda t: fidx[(t, 0, 0)]
    tend = lambda t: fidx[(t, 17, 1)]
    rstart = lambda r: n1f + 9*r
    syncs = [0] + [fidx[(0, s, 0)] for s in (range(2*(NPRE//4), 17, 2) if NPRE < 20 else (6, 10, 12, 16))] + [ tstart(4), tstart(5), fidx[(5, 10, 0)]]
    syncs += [fidx[(6, s, 0)] for s in opt.get('syncB', (0, 2, 4, 8, 12, 14))] + [rstart(r) for r in range(0, 18, 2)]
    pubs = {fidx[opt.get('pub1', (5, 10, 0))]: (1, [(1, rt) for rt in range(4)] + [(3, rt) for rt in range(4)]), fidx[(6, 4, 0)]: (2, [(5, rt) for rt in range(4)]),
            rstart(opt.get('pub3', 4)): (3, [(7, rt) for rt in range(4)] + [(8, rt) for rt in range(4)])}
    def a1load(s, rt):
        so = '0' if s < 4 else f's{28 + s//4}'
        return [('V', ('A', s, rt), f'buffer_load_dwordx4 {areg(4*s+rt)}, v{1+rt}, s[8:11], {so} offen offset:{1024*(s%4)} sc1')]
    def a2load(r, rho):
        if r < 16:
            pre = [f's_add_u32 s51, s44, {(9*(r & 3) + (r >> 2))*1024}'] if rho == 0 else []
            return pre + [('V', ('A2', r, rho), f'buffer_load_dwordx4 {areg(4*r+rho)}, v{242+rho}, s[20:23], s51 offen sc1')]
        pre = [f's_add_u32 s51, s45, {(4 + 18*(r-16))*1024}'] if rho == 0 else []
        if r == 16: pre += [f'v_lshlrev_b32 v254, 3, v13', f'v_sub_u32 v{242+rho}, v{242+rho}, v254']
        return pre + [('V', ('A2h', r, rho), f'buffer_load_dwordx2 {areg(4*r+rho, 0)}, v{242+rho}, s[20:23], s51 offen sc1'),
                      ('V', ('A2', r, rho), f'buffer_load_dwordx2 {areg(4*r+rho, 1)}, v{242+rho}, s[20:23], s51 offen offset:512 sc1')]
    def epilogue(tile):
        base = ACC + 32*accset[tile]; half = tile & 1; out = []
        for rt in range(4):
            g, u, p, t = base + 4*rt, base + 16 + 4*rt, PK + 4*rt + 2*half, T + 4*(rt & 1)
            for q in range(4): out.append(f'v_max_f32 v{t+q}, 0, v{g+q}')
            for q in range(4): out.append(f'v_mul_f32 v{t+q}, v{t+q}, v{u+q}')
            for h in range(2): out.append(f'v_cvt_pk_bf16_f32 v{p+h}, v{t+2*h}, v{t+2*h+1}')
            if tile == 8:
                out += [f'v_sub_u32 v{9+rt}, v{9+rt}, v241', ('V', ('S', 8, rt), f'buffer_store_dwordx2 v[{p}:{p+1}], v{9+rt}, s[16:19], 0 offen sc1')]
            elif half:
                out.append(('V', ('S', tile, rt), f'buffer_store_dwordx4 v[{p-2}:{p+1}], v{9+rt}, s[16:19], 0 offen offset:{1024*(tile//2)} sc1'))
        return out
    def flagload(st): return [('V', ('F', st), f'global_load_dword v15, v253, {WS} sc1')]
    def flagcheck(st):
        vq.wait([('F', st)])
        a(f'v_cmp_gt_u32 vcc, {st}, v15')
        a('s_nop 4')
        a(f's_cbranch_vccnz L_g_slow{st}')
        a.raw(f'L_g_back{st}:')
        slow.append(st)
    aq = [(('A', s), a1load(s, rt)) for s in range(18) for rt in range(4)]
    uq, valq = [], []
    nextu = NPRE
    for _ in range(opt.get('A0', 12)): emit(aq.pop(0)[1])
    lq = []
    def read(k):
        nonlocal nextu
        f = frags[k]
        if k in syncs:
            nxt = min([x for x in syncs if x > k] + [len(frags)])
            need = [ui for ui, u in enumerate(units) if not u['pre'] and k <= u['first'] < nxt]
            assert all(ui < nextu for ui in need), (k, need, nextu)
            while any(ui in need for ui, _ in uq): emit(uq.pop(0)[1])
            tags = [('U', ui) for ui in need]
            if k in pubs:
                while valq and any(('S',) + x not in vq.q for x in pubs[k][1]): emit([valq.pop(0)[1]])
                tags += [('S',) + x for x in pubs[k][1]]
            if tags: vq.wait(tags)
            if not (opt.get('nobar') and k >= n1f): a('s_barrier')
            if k in pubs:
                st = pubs[k][0]
                a(f'v_mov_b32 v254, {st}')
                a('s_mov_b64 exec, s[52:53]')
                vq.issue(('P', st), f'global_store_dword v240, v254, {WS} sc1')
                a('s_mov_b64 exec, -1')
            while nextu < len(units):
                u = units[nextu]
                busy = [v for v in units[:nextu] if v['off'] < u['off'] + u['size'] and u['off'] < v['off'] + v['size'] and v['last'] >= k - PD - 1]
                if busy or u['first'] > k + opt.get('look', 150): break
                uq.extend((nextu, it) for it in u['items']); nextu += 1
        r = BF + 4*(k % NBF)
        if opt.get('fakeb128') and f['ph'] == 2: return [(k, f'ds_read_b128 v[{r}:{r+3}], v1 offset:{1024*(k%40)}')]
        if opt.get('nords') and f['ph'] == 2: return []
        out = []
        for i, (kind, base, off) in enumerate(f['reads']):
            if kind == 'b128': out.append((k, f'ds_read_b128 v[{r}:{r+3}], v{base} offset:{off}'))
            else: out.append((k, f'ds_read_b64_tr_b16 v[{r+2*i}:{r+2*i+1}], v{base} offset:{off}'))
        return out
    def rd(x): a(x[1]); lq.append(x[0])
    a('s_mov_b64 s[52:53], 1')
    for k in range(PD):
        for x in read(k): rd(x)
    waited = set(); done_ep = set()
    ck = {fidx[(6, opt.get('chk1', 2), 0)]: 1, fidx[(6, 10, 0)]: 2, rstart(opt.get('chk3', 8)): 3}
    fl = {k - 14: v for k, v in ck.items()}
    credit = [0.0]
    tq = []
    if opt.get('touch', 1):
        a(f"""
        v_min_u32 v249, 40, v13
        s_mul_i32 s6, s36, 41
        v_add_u32 v249, s6, v249
        v_min_u32 v249, 161, v249
        s_lshr_b32 s6, s2, 3
        s_mul_i32 s6, s6, 324
        s_mul_i32 s28, s37, {9*1152}
        s_add_u32 s6, s6, s28
        s_and_b32 s28, s2, 1
        s_mul_i32 s28, s28, 162
        s_add_u32 s6, s6, s28
        v_add_lshl_u32 v249, v249, s6, 7
        """)
        tq = [[('V', ('T', 0), f'global_load_dword v255, v249, {P(B_WD)}')]]
    quiet = [0]
    tnext = [opt.get('t0', 40)]
    a2rounds = {1: range(0, 8), 2: range(8, 12), 3: range(12, 18)}
    for k, f in enumerate(frags):
        if k == n1f: mark('p2')
        if k == tstart(4): mark('t4')
        for s_ in (1, 3, 6, 11):
            if k == fidx[(0, s_, 0)]: mark(f's{s_}')
        if k == fidx[(6, 8, 0)]: mark('b8')
        if k == tstart(6): mark('t6')
        if k == rstart(6): mark('r6')
        if k == rstart(12): mark('r12')
        for t in range(9):
            if t not in done_ep and k > tend(t) + 1:
                valq += [(t, x) for x in epilogue(t)]; done_ep.add(t)
        if k in fl: emit(flagload(fl[k]))
        if k in ck:
            flagcheck(ck[k])
            aq += [(('A2', r), a2load(r, rho)) for r in a2rounds[ck[k]] for rho in range(4)]
        if f['ph'] == 1 and f['s'] == 0 and f['m'] == 0 and f['t'] >= 4:
            while valq and valq[0][0] <= f['t'] - 4: emit([valq.pop(0)[1]])
            assert f['t'] - 4 in done_ep
        if f['ph'] == 2 and f['r'] == 0:
            lim = 7 if f['tt'] < 6 else 8
            while valq and valq[0][0] <= lim: emit([valq.pop(0)[1]])
            assert lim in done_ep
        key = ('A', f['s']) if f['ph'] == 1 else ('A2', f['r'])
        if key not in waited:
            while any(x[0] == key for x in aq): emit(aq.pop(0)[1])
            vq.wait([key + (i,) for i in range(4)]); waited.add(key)
        a(f's_waitcnt lgkmcnt({min(15, sum(1 for x in lq if x > k))})')
        pend = []
        r = BF + 4*(k % NBF)
        for i, (d, ai, first) in enumerate(f['mf']):
            c = '0' if first else f'v[{d}:{d+3}]'
            a(f'v_mfma_f32_16x16x32_bf16 v[{d}:{d+3}], v[{r}:{r+3}], {areg(ai)}, {c}')
            did = False
            if i == 0 and k + PD < len(frags): pend = read(k + PD)
            nv = 2
            if i in (0, 2) and pend: rd(pend.pop(0)); nv = 1
            if i == 3: nv = 1
            if i == 1:
                aok = bool(aq) and (aq[0][0][0] == 'A' or k > fidx[(8, aq[0][0][1], 1)])
                au = (fidx[(0, aq[0][0][1], 0)] if aq[0][0][0] == 'A' else rstart(aq[0][0][1])) if aok else 1 << 30
                if aok and aq[0][0][0] == 'A' and au > k + opt.get('alook', 28): aok = False; au = 1 << 30
                uu = max([x for x in syncs if x <= units[uq[0][0]]['first']]) - PD if uq else 1 << 30
                urgent = min(au, uu) <= k + opt.get('urg', 24)
                credit[0] = min(credit[0] + opt.get('rate', 0.7), 2.0)
                if urgent or (credit[0] >= 1.0 and k >= quiet[0]):
                    if aok and au <= uu + opt.get('bias', 0): emit(aq.pop(0)[1]); did = True
                    elif uq: emit(uq.pop(0)[1]); did = True
                    elif aok: emit(aq.pop(0)[1]); did = True
                    if did: credit[0] -= 1.0
            if i == 2 and tq and k >= tnext[0] and not aq and ('U', opt.get('tneed', 53)) in vq.q:
                emit(tq.pop(0)); did = True; quiet[0] = k + opt.get('quiet', 50); print('touch at', k, 'units', nextu)
            if not did:
                for _ in range(min(nv, opt.get('nvmax', 2))):
                    if valq: emit([valq.pop(0)[1]])
    assert not aq and not uq and not valq and not tq and nextu == len(units)

    mark('end2')
    keep = [acc2(rho, tt) for tt in range(9) for rho in range(2)]
    send = [acc2(rho + 2, tt) for tt in range(9) for rho in range(2)]
    XR, GB = 16, 192
    a(f"""
    s_mul_i32 s6, s36, 18432
    v_add_u32 v2, s6, v1
    s_xor_b32 s6, s36, 2
    s_mul_i32 s6, s6, 18432
    v_add_u32 v3, s6, v1
    ; finaliser addresses: unit tt = 3*min(w,2)+j ; rows 16*(8rb2+2q+rho)+n ; d = 144cb2 + 16tt + 4g
    s_min_u32 s54, s36, 2
    s_lshl_b32 s6, s40, 7
    s_lshl_b32 s28, s37, 5
    s_add_u32 s6, s6, s28
    v_and_b32 v4, 15, v13
    v_add_u32 v4, s6, v4
    v_mul_u32_u24 v4, 1152, v4
    v_lshrrev_b32 v5, 4, v13
    s_mul_i32 s6, s41, 144
    s_mul_i32 s28, s54, 48
    s_add_u32 s6, s6, s28
    v_lshl_add_u32 v5, v5, 2, s6       ; d
    v_lshl_add_u32 v4, v5, 1, v4       ; out offset (rho 0)
    v_add_u32 v7, {16*1152}, v4
    v_add_u32 v8, {X1}, v4
    v_add_u32 v9, {X1}, v7
    v_lshlrev_b32 v5, 2, v5
    v_add_u32 v5, {MODF + 3*2304}, v5
    s_barrier
    """)
    for i, d in enumerate(send): a(f'ds_write_b128 v2, v[{d}:{d+3}] offset:{1024*i}')
    for j in range(3):
        a(f'global_load_dwordx2 v[{XR+4*j}:{XR+4*j+1}], v8, {WS} offset:{32*j} sc1')
        a(f'global_load_dwordx2 v[{XR+4*j+2}:{XR+4*j+3}], v9, {WS} offset:{32*j} sc1')
        a(f'global_load_dwordx4 v[{GB+4*j}:{GB+4*j+3}], v5, {WS} offset:{64*j}')
    a(f"""
    s_lshl_b32 s55, s40, 2
    s_add_u32 s55, s55, s41
    s_lshl_b32 s56, s0, 1
    s_add_u32 s56, s56, s1
    s_lshl_b32 s6, s55, 2
    s_add_u32 s28, s6, s56
    s_lshl_b32 s28, s28, 2
    s_add_u32 s28, s28, s37
    s_mul_i32 s28, s28, 9216
    s_add_u32 s28, s28, {PART}
    v_add_u32 v10, s28, v1
    v_add_u32 v11, 4096, v10
    v_add_u32 v12, 8192, v10
    s_add_u32 s57, s6, s37             ; 4id + q
    s_waitcnt lgkmcnt(0)
    s_barrier
    """)
    for i, d in enumerate(send): a(f'ds_read_b128 v[{d}:{d+3}], v3 offset:{1024*i}')
    a('s_cmp_eq_u32 s56, s37')
    a.branch('s_cbranch_scc1 L_g_keep')
    for tt in range(9):
        for rho in range(2):
            i = 2*tt + rho; d, e = keep[i], send[i]
            a(f's_waitcnt lgkmcnt({min(15, 17-i)})')
            a(f'v_pk_add_f32 v[{d}:{d+1}], v[{d}:{d+1}], v[{e}:{e+1}]')
            a(f'v_pk_add_f32 v[{d+2}:{d+3}], v[{d+2}:{d+3}], v[{e+2}:{e+3}]')
        o = send[2*tt]
        for rho in range(2):
            d = keep[2*tt + rho]
            a(f'v_cvt_pk_bf16_f32 v{o+2*rho}, v{d}, v{d+1}')
            a(f'v_cvt_pk_bf16_f32 v{o+2*rho+1}, v{d+2}, v{d+3}')
        a(f'global_store_dwordx4 v{10 + tt//4}, v[{o}:{o+3}], {WS} offset:{1024*(tt % 4)} sc1')
    a.branch('s_branch L_g_sent')
    a.label('L_g_keep')
    KA = 4*18432
    a(f'v_add_u32 v10, {KA}, v1')
    for i in range(18):
        d, e = keep[i], send[i]
        a(f's_waitcnt lgkmcnt({min(15, 17-i)})' if i < 3 else 's_waitcnt lgkmcnt(15)' if False else f's_waitcnt lgkmcnt({min(15, 17-i)})')
        a(f'v_pk_add_f32 v[{d}:{d+1}], v[{d}:{d+1}], v[{e}:{e+1}]')
        a(f'v_pk_add_f32 v[{d+2}:{d+3}], v[{d+2}:{d+3}], v[{e+2}:{e+3}]')
    for i in range(18):
        d = keep[i]
        a(f'ds_write_b128 v10, v[{d}:{d+3}] offset:{1024*i}')
    a.label('L_g_sent')
    a(f"""
    s_lshl_b32 s6, s57, 6
    s_add_u32 s6, s6, {FX}
    v_mov_b32 v10, s6
    v_mov_b32 v11, 1
    v_and_b32 v12, 3, v13
    s_lshl_b32 s6, s55, 2
    v_add_u32 v12, s6, v12
    v_lshlrev_b32 v12, 6, v12
    v_add_u32 v12, {FX}, v12
    s_mul_i32 s6, s54, 6144
    s_add_u32 s6, s6, {KA}
    v_add_u32 v2, s6, v1
    s_lshl_b32 s6, s57, 2
    s_mul_i32 s6, s6, 9216
    s_mul_i32 s28, s54, 3072
    s_add_u32 s6, s6, s28
    s_add_u32 s6, s6, {PART}
    """)
    for i in range(3):
        a(f's_add_u32 s28, s37, {i+1}')
        a('s_and_b32 s28, s28, 3')
        a('s_mul_i32 s28, s28, 9216')
        a('s_add_u32 s28, s28, s6')
        a(f'v_add_u32 v{28+i}, s28, v1')
    a(f"""
    s_mov_b32 s39, 0xffff0000
    s_mov_b32 s49, {SPIN}
    s_cmp_lg_u32 s36, 3
    s_waitcnt vmcnt(0) lgkmcnt(0)
    s_barrier
    s_cbranch_scc1 L_g_fin
    s_mov_b64 exec, 1
    global_store_dword v10, v11, {WS} sc1
    s_branch L_g_end
    """)
    a.label('L_g_fin')
    mark('sent')
    O, PR, U = 48, 72, 108
    for i in range(6): a(f'ds_read_b128 v[{O+4*i}:{O+4*i+3}], v2 offset:{1024*i}')
    for i in range(12): unpack(a, 132+2*i, 133+2*i, XR+i, 's39')
    a.label('L_g_xpoll')
    a(f"""
    global_load_dword v15, v12, {WS} sc1
    s_sub_u32 s49, s49, 1
    s_waitcnt vmcnt(0)
    v_cmp_eq_u32 vcc, 0, v15
    s_cmp_eq_u32 s49, 0
    """)
    a.branch('s_cbranch_scc1 L_g_xpoll_ok')
    a.branch('s_cbranch_vccnz L_g_xpoll')
    a.label('L_g_xpoll_ok')
    mark('xok')
    for j in range(3):
        for i in range(3): a(f'global_load_dwordx4 v[{PR+12*j+4*i}:{PR+12*j+4*i+3}], v{28+i}, {WS} offset:{1024*j} sc1')
    a('s_waitcnt lgkmcnt(0)')
    nst = 0
    for j in range(3):
        for i in range(3):
            a(f's_waitcnt vmcnt({8-3*j-i + nst})')
            for q in range(4): unpack(a, U+2*q, U+2*q+1, PR+12*j+4*i+q, 's39')
            for q in range(4): a(f'v_pk_add_f32 v[{O+8*j+2*q}:{O+8*j+2*q+1}], v[{O+8*j+2*q}:{O+8*j+2*q+1}], v[{U+2*q}:{U+2*q+1}]')
        for q in range(4):
            g = GB + 4*j + 2*(q & 1)
            a(f'v_pk_fma_f32 v[{O+8*j+2*q}:{O+8*j+2*q+1}], v[{O+8*j+2*q}:{O+8*j+2*q+1}], v[{g}:{g+1}], v[{132+8*j+2*q}:{133+8*j+2*q}]')
        for q in range(4): a(f'v_cvt_pk_bf16_f32 v{120+4*j+q}, v{O+8*j+2*q}, v{O+8*j+2*q+1}')
        a(f'global_store_dwordx2 v4, v[{120+4*j}:{121+4*j}], {P(D_OUT)} offset:{32*j}')
        a(f'global_store_dwordx2 v7, v[{122+4*j}:{123+4*j}], {P(D_OUT)} offset:{32*j}')
        nst += 2
    a.branch('s_branch L_g_end')
    for st in slow:
        a.label(f'L_g_slow{st}')
        a(f's_mov_b32 s49, {SPIN}')
        a.label(f'L_g_sl{st}')
        a(f"""
        global_load_dword v15, v253, {WS} sc1
        s_sub_u32 s49, s49, 1
        s_waitcnt vmcnt(0)
        v_cmp_gt_u32 vcc, {st}, v15
        s_cmp_eq_u32 s49, 0
        """)
        a.branch(f's_cbranch_scc1 L_g_back{st}')
        a.branch(f's_cbranch_vccnz L_g_sl{st}')
        a.branch(f's_branch L_g_back{st}')
    a.label('L_g_end')
    print('ffn nops', a.nops)
    return ('ffn_kernel', a.text(), dict(vgpr=256, sgpr=80, accum=256, agpr=256), 256, 256, 163840)
```

```python
from asmlib import Asm
from gen import *

FL1 = 0x10000
FL2 = 0x14000
N_LN, N_GV, N_XR, N_CH = 128, 108, 7, 576
SPIN = 400000
FO = dict(pm='sc1', sleep=2, w0=False)

def cmul(a, p, x, y):
    a(f'v_pk_mul_f32 v[{p}:{p+1}], v[{x}:{x+1}], v[{y}:{y+1}] op_sel_hi:[0,1]')
    a(f'v_pk_fma_f32 v[{p}:{p+1}], v[{x}:{x+1}], v[{y}:{y+1}], v[{p}:{p+1}] op_sel:[1,1,0] op_sel_hi:[1,0,1] neg_lo:[1,0,0]')
def cmuls(a, items):
    for p, x, y in items: a(f'v_pk_mul_f32 v[{p}:{p+1}], v[{x}:{x+1}], v[{y}:{y+1}] op_sel_hi:[0,1]')
    for p, x, y in items: a(f'v_pk_fma_f32 v[{p}:{p+1}], v[{x}:{x+1}], v[{y}:{y+1}], v[{p}:{p+1}] op_sel:[1,1,0] op_sel_hi:[1,0,1] neg_lo:[1,0,0]')
def cexps(a, items, al, be):
    for p, k, t in items:
        a(f'v_mul_f32 v{t}, {hx(f32(k))}, v{al}')
        a(f'v_mul_f32 v{p+1}, {hx(f32(k))}, v{be}')
    for p, k, t in items:
        a(f'v_exp_f32 v{t}, v{t}')
        a(f'v_fract_f32 v{p+1}, v{p+1}')
    for p, k, t in items:
        a(f'v_cos_f32 v{p}, v{p+1}')
        a(f'v_sin_f32 v{p+1}, v{p+1}')
    for p, k, t in items:
        a(f'v_mul_f32 v{p}, v{t}, v{p}')
        a(f'v_mul_f32 v{p+1}, v{t}, v{p+1}')

def get_nonce(a, tag, vt):
    if FO['w0']:
        a('s_cmp_lg_u32 s36, 0')
        a.branch(f's_cbranch_scc1 L_non_{tag}_ok')
    a(f's_mov_b32 s41, {SPIN}')
    a(f'v_mov_b32 v{vt}, 0')
    a.label(f'L_non_{tag}')
    a(f"""
    global_load_dword v{vt+1}, v{vt}, s[38:39] sc1
    s_sub_u32 s41, s41, 1
    s_waitcnt vmcnt(0)
    v_readfirstlane_b32 s40, v{vt+1}
    s_cmp_eq_u32 s41, 0
    """)
    a.branch(f's_cbranch_scc1 L_non_{tag}_ok')
    a('s_cmp_eq_u32 s40, 0')
    a.branch(f's_cbranch_scc1 L_non_{tag}')
    a.label(f'L_non_{tag}_ok')

def poll(a, tag, base, n, vt):
    k = (n + 255)//256
    for i in range(k):
        a(f'v_add_u32 v{vt+4+i}, {256*i}, v0')
        a(f'v_min_u32 v{vt+4+i}, {n-1}, v{vt+4+i}')
        a(f'v_lshlrev_b32 v{vt+4+i}, 6, v{vt+4+i}')
        a(f'v_add_u32 v{vt+4+i}, {base}, v{vt+4+i}')
    a(f's_mov_b32 s41, {SPIN}')
    a.label(f'L_poll_{tag}')
    for i in range(k): a(f'global_load_dword v{vt+i}, v{vt+4+i}, s[4:5] sc1')
    a('s_sub_u32 s41, s41, 1')
    a('s_waitcnt vmcnt(0)')
    for i in range(k): a(f'v_xor_b32 v{vt+i}, s40, v{vt+i}')
    for i in range(1, k): a(f'v_or_b32 v{vt}, v{vt}, v{vt+i}')
    a(f'v_cmp_ne_u32 vcc, 0, v{vt}')
    a('s_cmp_eq_u32 s41, 0')
    a.branch(f's_cbranch_scc1 L_poll_{tag}_ok')
    a.branch(f's_cbranch_vccz L_poll_{tag}_ok')
    a(f's_sleep {FO["sleep"]}')
    a.branch(f's_branch L_poll_{tag}')
    a.label(f'L_poll_{tag}_ok')
    a('s_barrier')

def publish(a, tag, sflag, vt):
    a('s_waitcnt vmcnt(0)')
    a('s_barrier')
    a('s_cmp_lg_u32 s36, 0')
    a.branch(f's_cbranch_scc1 L_pub_{tag}')
    a(f"""
    v_mov_b32 v{vt}, s{sflag}
    v_mov_b32 v{vt+1}, s40
    s_mov_b64 exec, 1
    global_store_dword v{vt}, v{vt+1}, s[4:5] {FO['pm']}
    s_mov_b64 exec, -1
    """)
    a.label(f'L_pub_{tag}')

def rep_gu_issue(a, R):
    a(f"""
    s_load_dwordx4 s[8:11], s[0:1], {B_WG}
    s_mul_i32 s16, s42, 1821
    s_lshr_b32 s16, s16, 16            ; s = P/36
    s_mul_i32 s17, s16, 36
    s_sub_u32 s17, s42, s17            ; G
    s_mul_i32 s18, s16, {32*9216}
    s_lshl_b32 s19, s17, 8
    s_add_u32 s18, s18, s19
    v_bfe_u32 v4, v0, 4, 2
    v_mul_u32_u24 v4, {8*9216}, v4
    v_and_b32 v5, 15, v0
    v_lshl_add_u32 v4, v5, 4, v4
    v_add_u32 v4, s18, v4
    s_waitcnt lgkmcnt(0)
    """)
    for i in range(8):
        a(f'global_load_dwordx4 v[{R+4*i}:{R+4*i+3}], v4, s[8:9] nt')
        a(f'global_load_dwordx4 v[{R+32+4*i}:{R+32+4*i+3}], v4, s[10:11] nt')
        if i < 7: a('v_add_u32 v4, 9216, v4')
    a(f"""
    s_mul_i32 s18, s17, {8*36}
    s_lshl_b32 s19, s16, 1
    s_add_u32 s18, s18, s19
    s_lshl_b32 s18, s18, 10
    s_add_u32 s18, s18, {WGU}
    v_and_b32 v6, 63, v0
    v_lshlrev_b32 v6, 4, v6
    v_add_u32 v6, s18, v6
    s_mov_b32 s20, 0x05040100
    s_mov_b32 s21, 0x07060302
    """)
def rep_gu_finish(a, R, O):
    k = 0
    for j in range(8):
        for mat in range(2):
            o = O + 4*(k % 4); k += 1
            for p in range(4):
                a(f'v_perm_b32 v{o+p}, v{R+32*mat+4*(2*p+1)+j//2}, v{R+32*mat+4*(2*p)+j//2}, {"s21" if j & 1 else "s20"}')
            a(f'global_store_dwordx4 v6, v[{o}:{o+3}], s[4:5] offset:{1024*mat} sc1')
        if j < 7: a('v_add_u32 v6, 36864, v6')

def rep_wd(a, R):
    a(f"""
    s_load_dwordx2 s[12:13], s[0:1], {B_WD}
    s_mul_i32 s16, s42, 7282
    s_lshr_b32 s16, s16, 16            ; G
    s_mul_i32 s17, s16, 9
    s_sub_u32 s17, s42, s17            ; cgp
    v_and_b32 v2, 63, v0
    v_lshrrev_b32 v4, 5, v2
    v_lshlrev_b32 v4, 3, v4
    v_bfe_u32 v5, v2, 3, 2
    v_add_u32 v4, v4, v5
    v_mul_u32_u24 v4, 1152, v4
    v_and_b32 v5, 7, v2
    v_lshl_add_u32 v4, v5, 4, v4
    s_mul_i32 s18, s16, {128*1152}
    s_lshl_b32 s19, s17, 7
    s_add_u32 s18, s18, s19
    v_add_u32 v4, s18, v4
    v_add_u32 v5, {4*1152}, v4
    s_waitcnt lgkmcnt(0)
    """)
    for i in range(8):
        a(f'global_load_dwordx4 v[{R+4*i}:{R+4*i+3}], v4, s[12:13] nt')
        if i < 7: a(f'v_add_u32 v4, {16*1152}, v4')
    for i in range(8):
        a(f'global_load_dwordx4 v[{R+32+4*i}:{R+32+4*i+3}], v5, s[12:13] nt')
        if i < 7: a(f'v_add_u32 v5, {16*1152}, v5')
    a(f"""
    s_mul_i32 s18, s36, 8704
    v_lshrrev_b32 v4, 5, v2
    v_mul_u32_u24 v4, 544, v4
    v_and_b32 v5, 31, v2
    v_lshl_add_u32 v4, v5, 4, v4
    v_add_u32 v4, s18, v4
    v_lshrrev_b32 v5, 2, v2            ; 4g + (i>>2)
    v_mul_u32_u24 v5, 544, v5
    v_and_b32 v6, 3, v2
    v_lshl_add_u32 v5, v6, 3, v5
    v_add_u32 v5, s18, v5
    v_lshlrev_b32 v6, 4, v2
    """)
    for dt in range(4):
        a(f"""
        s_lshl_b32 s18, s17, 2
        s_add_u32 s18, s18, {dt}
        s_mul_i32 s19, s18, 57
        s_lshr_b32 s19, s19, 9
        s_mul_i32 s19, s19, {144*9-9}
        s_add_u32 s18, s18, s19
        s_mul_i32 s19, s16, 36
        s_add_u32 s18, s18, s19
        s_lshl_b32 s18, s18, 10
        s_add_u32 s{22+dt}, s18, {WD}
        """)
    O = R + 64
    for half in range(2):
        a(f's_waitcnt vmcnt({8 if half == 0 else 8})')
        for i in range(8): a(f'ds_write_b128 v4, v[{R+32*half+4*i}:{R+32*half+4*i+3}] offset:{1088*i}')
        a('s_waitcnt lgkmcnt(0)')
        for e in range(2):
            for dt in range(4):
                o = O + 4*(4*e + dt)
                for h in range(2): a(f'ds_read_b64_tr_b16 v[{o+2*h}:{o+2*h+1}], v5 offset:{(2*e+h)*128 + 32*dt}')
        for e in range(2):
            for dt in range(4):
                o = O + 4*(4*e + dt)
                a(f's_waitcnt lgkmcnt({2*(7-4*e-dt)})')
                a(f'v_add_u32 v7, s{22+dt}, v6')
                if 2*half + e: a(f'v_add_u32 v7, {(2*half+e)*9216}, v7')
                a(f'global_store_dwordx4 v7, v[{o}:{o+3}], s[4:5] sc1')

def role_gemv(a):
    a(f"""
    s_load_dwordx2 s[6:7], s[0:1], {C_C}
    s_load_dwordx2 s[8:9], s[0:1], {W_MOD}
    s_mul_i32 s10, s3, 2428
    s_lshr_b32 s10, s10, 16            ; p = wg/27
    s_mul_i32 s11, s10, 27
    s_sub_u32 s11, s3, s11             ; cg
    s_mul_i32 s12, s10, 144
    v_lshrrev_b32 v1, 4, v0
    v_and_b32 v2, 15, v0               ; c16
    v_add_u32 v3, s12, v1
    v_mul_u32_u24 v5, 6912, v3
    s_lshl_b32 s14, s11, 8
    v_lshl_add_u32 v5, v2, 4, v5
    v_add_u32 v5, s14, v5
    v_min_u32 v4, 8, v2
    v_lshl_add_u32 v4, v4, 4, v3
    v_lshlrev_b32 v4, 1, v4
    s_waitcnt lgkmcnt(0)
    global_load_ushort v44, v4, s[6:7]
    """)
    W0, C0, ACC, T = 8, 44, 54, 62
    for i in range(9):
        a(f'global_load_dwordx4 v[{W0+4*i}:{W0+4*i+3}], v5, s[8:9] nt')
        if i < 8: a(f'v_add_u32 v5, {16*6912}, v5')
    a('s_mov_b32 s15, 0xffff0000')
    a('s_waitcnt vmcnt(9)')
    a(f"""
    v_lshlrev_b32 v53, 16, v44
    v_mul_f32 v{T}, {hx(LOG2E|0x80000000)}, v53
    v_exp_f32 v{T}, v{T}
    v_add_f32 v{T}, 1.0, v{T}
    v_rcp_f32 v{T}, v{T}
    v_mul_f32 v53, v53, v{T}
    """)
    rnd1(a, 53)
    for i in range(9): a(f'v_mov_b32_dpp v{C0+i}, v53 row_newbcast:{i} row_mask:0xf bank_mask:0xf')
    for i in range(9):
        a(f's_waitcnt vmcnt({8-i})')
        for q in range(4):
            t = T + 2*(q & 1)
            unpack(a, t, t+1, W0+4*i+q, 's15')
            if i == 0:
                a(f'v_mul_f32 v{ACC+2*q}, v{C0+i}, v{t}')
                a(f'v_mul_f32 v{ACC+2*q+1}, v{C0+i}, v{t+1}')
            else:
                a(f'v_fmac_f32 v{ACC+2*q}, v{C0+i}, v{t}')
                a(f'v_fmac_f32 v{ACC+2*q+1}, v{C0+i}, v{t+1}')
    a(f"""
    v_lshlrev_b32 v6, 9, v1
    v_lshl_add_u32 v6, v2, 5, v6
    ds_write_b128 v6, v[{ACC}:{ACC+3}]
    ds_write_b128 v6, v[{ACC+4}:{ACC+7}] offset:16
    v_and_b32 v6, 127, v0
    v_lshlrev_b32 v6, 2, v6
    s_waitcnt lgkmcnt(0)
    s_barrier
    """)
    for j in range(16): a(f'ds_read_b32 v{8+j}, v6 offset:{512*j}')
    a(f"""
    s_mul_i32 s12, s10, {3456*4}
    s_lshl_b32 s14, s11, 9
    s_add_u32 s12, s12, s14
    v_add_u32 v6, s12, v6
    s_waitcnt lgkmcnt(0)
    """)
    for st in (8, 4, 2, 1):
        for j in range(st): a(f'v_add_f32 v{8+j}, v{8+j}, v{8+j+st}')
    a('s_cmp_ge_u32 s36, 2')
    a.branch('s_cbranch_scc1 L_gv_nost')
    a(f'global_store_dword v6, v8, s[4:5] offset:{MODP} sc1')
    a.label('L_gv_nost')
    get_nonce(a, 'gv', 30)
    a('s_lshl_b32 s43, s3, 6')
    a(f's_add_u32 s43, s43, {FL1 + 64*N_LN}')
    publish(a, 'gv', 43, 30)
    a.raw(';MARK0')
    if FO.get('norep'): a.branch('s_branch L_f_end')
    a('s_lshl_b32 s42, s3, 2')
    a('s_add_u32 s42, s42, s36')
    a('s_cmp_ge_u32 s3, 34')
    a.branch('s_cbranch_scc1 L_gv_wd')
    a('s_add_u32 s42, s42, 512')
    rep_gu_issue(a, 8)
    a('s_waitcnt vmcnt(0)')
    rep_gu_finish(a, 8, 72)
    a.branch('s_branch L_f_end')
    a.label('L_gv_wd')
    a('s_sub_u32 s42, s42, 136')
    a.label('L_wd')
    rep_wd(a, 8)
    a.branch('s_branch L_f_end')

def role_ln(a):
    ST = LN1_STRIDE
    a(f"""
    s_load_dwordx2 s[6:7], s[0:1], {A_U}
    s_and_b32 s37, s3, 7
    s_lshr_b32 s11, s3, 3
    s_lshl_b32 s37, s37, 4
    s_add_u32 s37, s37, s11
    v_lshrrev_b32 v1, 4, v0
    v_and_b32 v2, 15, v0
    s_lshl_b32 s11, s37, 4
    v_add_u32 v3, s11, v1
    v_mul_u32_u24 v3, 1152, v3
    v_lshl_add_u32 v3, v2, 3, v3
    s_waitcnt lgkmcnt(0)
    """)
    P0, X0 = 8, 26
    for i in range(9): a(f'global_load_dwordx2 v[{P0+2*i}:{P0+2*i+1}], v3, s[6:7] offset:{128*i}')
    a('s_or_b32 s12, s3, s36')
    a('s_cmp_lg_u32 s12, 0')
    a.branch('s_cbranch_scc1 L_ln_non')
    a(f"""
    s_memrealtime s[12:13]
    v_mov_b32 v4, 0
    s_waitcnt lgkmcnt(0)
    s_or_b32 s12, s12, 0x80000000
    v_mov_b32 v5, s12
    s_mov_b64 exec, 1
    global_store_dword v4, v5, s[38:39] sc1
    s_mov_b64 exec, -1
    s_waitcnt vmcnt(0)
    """)
    a.label('L_ln_non')
    a(f"""
    v_mul_u32_u24 v4, {ST}, v1
    v_lshl_add_u32 v4, v2, 3, v4
    s_mov_b32 s12, 0xffff0000
    """)
    for i in range(9):
        a(f's_waitcnt vmcnt({8-i})')
        for q in range(2): unpack(a, X0+4*i+2*q, X0+4*i+2*q+1, P0+2*i+q, 's12')
    a(f'v_pk_add_f32 v[64:65], v[{X0}:{X0+1}], v[{X0+2}:{X0+3}]')
    a(f'v_pk_add_f32 v[66:67], v[{X0+4}:{X0+5}], v[{X0+6}:{X0+7}]')
    for j in range(8, 36, 4):
        a(f'v_pk_add_f32 v[64:65], v[64:65], v[{X0+j}:{X0+j+1}]')
        a(f'v_pk_add_f32 v[66:67], v[66:67], v[{X0+j+2}:{X0+j+3}]')
    a('v_pk_add_f32 v[64:65], v[64:65], v[66:67]')
    a('v_add_f32 v62, v64, v65')
    row16_allsum(a, 62)
    a(f'v_mul_f32 v62, {hx(f32(1.0/576))}, v62')
    for j in range(0, 36, 2):
        t = 68 + 2*((j//2) % 4); acc = 64 + 2*((j//2) % 2)
        a(f'v_pk_add_f32 v[{t}:{t+1}], v[{X0+j}:{X0+j+1}], v[62:63] op_sel_hi:[1,0] neg_lo:[0,1] neg_hi:[0,1]')
        if j < 4: a(f'v_pk_mul_f32 v[{acc}:{acc+1}], v[{t}:{t+1}], v[{t}:{t+1}]')
        else: a(f'v_pk_fma_f32 v[{acc}:{acc+1}], v[{t}:{t+1}], v[{t}:{t+1}], v[{acc}:{acc+1}]')
    a('v_pk_add_f32 v[64:65], v[64:65], v[66:67]')
    a('v_add_f32 v64, v64, v65')
    row16_allsum(a, 64)
    a(f'v_mul_f32 v64, {hx(f32(1.0/576))}, v64')
    ln_scalars(a, 62, 64)
    for i in range(9):
        xs = [(X0+4*i+2*q, P0+2*i+q) for q in range(2)]
        for x, p in xs: a(f'v_pk_add_f32 v[{x}:{x+1}], v[{x}:{x+1}], v[62:63] op_sel_hi:[1,0] neg_lo:[0,1] neg_hi:[0,1]')
        for x, p in xs: a(f'v_cvt_pk_bf16_f32 v{p}, v{x}, v{x+1}')
        for x, p in xs: unpack(a, x, x+1, p, 's12')
        for x, p in xs: a(f'v_pk_mul_f32 v[{x}:{x+1}], v[{x}:{x+1}], v[64:65] op_sel_hi:[1,0]')
        for x, p in xs: a(f'v_cvt_pk_bf16_f32 v{p}, v{x}, v{x+1}')
        a(f'ds_write_b64 v4, v[{P0+2*i}:{P0+2*i+1}] offset:{128*i}')
    a(f"""
    v_bfe_u32 v5, v0, 4, 1
    v_lshlrev_b32 v5, 3, v5
    v_lshrrev_b32 v6, 2, v2
    v_add_u32 v5, v5, v6
    v_mul_u32_u24 v5, {ST}, v5
    v_and_b32 v6, 3, v0
    v_lshl_add_u32 v5, v6, 3, v5
    v_bfe_u32 v6, v0, 5, 1
    v_lshl_add_u32 v5, v6, 5, v5
    s_lshl_b32 s13, s36, 6
    v_add_u32 v5, s13, v5
    s_add_u32 s44, s36, 16
    s_min_u32 s44, s44, 17
    s_sub_u32 s44, s44, s36
    s_lshl_b32 s14, s44, 6
    v_add_u32 v62, s14, v5
    v_lshl_add_u32 v7, v6, 4, v2
    v_lshlrev_b32 v7, 5, v7
    v_bfe_u32 v6, v0, 4, 1
    v_lshl_add_u32 v7, v6, 4, v7
    s_mul_i32 s11, s37, 18432
    s_lshl_b32 s13, s36, 10
    s_add_u32 s11, s11, s13
    s_add_u32 s11, s11, {N1T}
    v_add_u32 v7, s11, v7
    s_lshl_b32 s14, s44, 10
    v_add_u32 v63, s14, v7
    s_waitcnt lgkmcnt(0)
    s_barrier
    """)
    for j in range(5):
        for q in range(2):
            a(f'ds_read_b64_tr_b16 v[{P0+4*j+2*q}:{P0+4*j+2*q+1}], v{5 if j < 4 else 62} offset:{(256*j if j < 4 else 0) + 4*ST*q}')
    for j in range(5):
        a(f's_waitcnt lgkmcnt({8-2*j})')
        a(f'global_store_dwordx4 v{7 if j < 4 else 63}, v[{P0+4*j}:{P0+4*j+3}], s[4:5] sc1')
        if j < 3: a('v_add_u32 v7, 4096, v7')
    get_nonce(a, 'ln', 30)
    a('s_lshl_b32 s43, s3, 6')
    a(f's_add_u32 s43, s43, {FL1}')
    publish(a, 'ln', 43, 30)
    a.raw(';MARK0')
    a('s_lshl_b32 s42, s3, 2')
    a('s_add_u32 s42, s42, s36')
    if not FO.get('norep'): rep_gu_issue(a, 8)
    XF = 104
    a(f"""
    s_lshl_b32 s11, s37, 4
    v_add_u32 v3, s11, v2
    v_mul_u32_u24 v3, 1152, v3
    v_bfe_u32 v1, v0, 4, 2             ; g
    v_lshl_add_u32 v3, v1, 4, v3
    s_lshl_b32 s13, s36, 6
    v_add_u32 v3, s13, v3
    s_lshl_b32 s14, s44, 6
    v_add_u32 v7, s14, v3
    """)
    for j in range(5): a(f'global_load_dwordx4 v[{XF+4*j}:{XF+4*j+3}], v{3 if j < 4 else 7}, s[6:7] offset:{256*j if j < 4 else 0}')
    a('s_waitcnt vmcnt(5)')
    if not FO.get('norep'): rep_gu_finish(a, 8, 72)
    a.raw(';MARK1')
    MT = 18944; RED = MT + 4608
    a(f"""
    v_and_b32 v88, 63, v0
    v_min_u32 v89, 58, v88
    v_lshlrev_b32 v89, 4, v89
    v_add_u32 v89, {FL1}, v89
    """)
    poll(a, 'ln1', FL1 + 64*N_LN, N_GV, 8)
    a(f"""
    v_lshlrev_b32 v90, 4, v0
    v_add_u32 v91, 4096, v90
    v_min_u32 v91, {287*16}, v91
    v_add_u32 v92, {MODP + 1728*4}, v90
    v_add_u32 v93, {MODP + 1728*4}, v91
    """)
    for p in range(4):
        a(f'global_load_dwordx4 v[{8+4*p}:{11+4*p}], v92, s[4:5] sc1')
        a(f'global_load_dwordx4 v[{24+4*p}:{27+4*p}], v93, s[4:5] sc1')
        if p < 3:
            a(f'v_add_u32 v92, {3456*4}, v92')
            a(f'v_add_u32 v93, {3456*4}, v93')
    a(f"""
    v_cmp_le_u32 vcc, 144, v0
    v_cndmask_b32 v94, 0, 1.0, vcc
    v_lshlrev_b32 v95, 4, v88
    v_add_u32 v95, {FL2}, v95
    v_add_u32 v96, 1024, v95
    v_min_u32 v97, 15, v88
    v_lshlrev_b32 v97, 4, v97
    v_add_u32 v97, {FL2+2048}, v97
    v_lshrrev_b32 v98, 1, v88
    v_lshlrev_b32 v98, 12, v98
    v_and_b32 v99, 1, v0
    v_lshl_add_u32 v98, v99, 4, v98
    s_lshl_b32 s11, s37, 5
    s_lshl_b32 s13, s36, 17
    s_add_u32 s11, s11, s13
    s_add_u32 s11, s11, {GT}
    v_add_u32 v98, s11, v98
    s_lshl_b32 s14, s44, 17
    v_add_u32 v99, s14, v98
    s_waitcnt vmcnt(0)
    """)
    for b, one in ((8, 'v94'), (24, '1.0')):
        for h in range(2):
            r = b + 2*h
            a(f'v_pk_add_f32 v[{r}:{r+1}], v[{r}:{r+1}], v[{r+4}:{r+5}]')
            a(f'v_pk_add_f32 v[{r+8}:{r+9}], v[{r+8}:{r+9}], v[{r+12}:{r+13}]')
        for h in range(2):
            r = b + 2*h
            a(f'v_pk_add_f32 v[{r}:{r+1}], v[{r}:{r+1}], v[{r+8}:{r+9}]')
        for h in range(2):
            r = b + 2*h
            a(f'v_cvt_pk_bf16_f32 v{b+4+h}, v{r}, v{r+1}')
            unpack(a, r, r+1, b+4+h, 's12')
            a(f'v_add_f32 v{r}, {one}, v{r}')
            a(f'v_add_f32 v{r+1}, {one}, v{r+1}')
            a(f'v_cvt_pk_bf16_f32 v{b+4+h}, v{r}, v{r+1}')
            unpack(a, r, r+1, b+4+h, 's12')
    a(f"""
    ds_write_b128 v90, v[8:11] offset:{MT}
    ds_write_b128 v91, v[24:27] offset:{MT}
    s_mul_i32 s13, s36, 4736
    v_lshlrev_b32 v100, 4, v88
    v_add_u32 v100, s13, v100
    v_lshrrev_b32 v101, 2, v2
    v_lshl_add_u32 v101, v1, 3, v101
    v_lshlrev_b32 v101, 5, v101
    v_and_b32 v102, 3, v0
    v_lshl_add_u32 v101, v102, 3, v101
    v_add_u32 v101, s13, v101
    v_lshlrev_b32 v102, 5, v1
    s_lshl_b32 s13, s36, 7
    v_add_u32 v102, s13, v102
    s_lshl_b32 s14, s44, 7
    v_add_u32 v103, s14, v102
    """)
    poll(a, 'ln2', FL2, N_CH, 12)
    a.raw(';MARK2')
    for j in range(5):
        a(f'global_load_dwordx4 v[{8+4*j}:{11+4*j}], v{98 if j < 4 else 99}, s[4:5] sc1')
        if j < 3: a(f'v_add_u32 v98, {4<<17}, v98')
    X = 48
    for j in range(4):
        a(f's_waitcnt vmcnt({4-j})')
        a(f'ds_write_b128 v100, v[{8+4*j}:{11+4*j}] offset:{1024*j}')
    a('s_waitcnt lgkmcnt(0)')
    for j in range(4):
        for q in range(2): a(f'ds_read_b64_tr_b16 v[{28+4*j+2*q}:{29+4*j+2*q}], v101 offset:{1024*j+128*q}')
    a('s_waitcnt vmcnt(0) lgkmcnt(0)')
    a('ds_write_b128 v100, v[24:27]')
    a('s_waitcnt lgkmcnt(0)')
    for q in range(2): a(f'ds_read_b64_tr_b16 v[{44+2*q}:{45+2*q}], v101 offset:{128*q}')
    a(f'v_add_u32 v3, {X1}, v3')
    a(f'v_add_u32 v7, {X1}, v7')
    for j in range(5):
        if j == 4: a('s_waitcnt lgkmcnt(0)')
        for q in range(4): unpack(a, X+8*j+2*q, X+8*j+2*q+1, XF+4*j+q, 's12')
        for q in range(4): unpack(a, 8+2*q, 9+2*q, 28+4*j+q, 's12')
        for q in range(4): a(f'v_pk_add_f32 v[{X+8*j+2*q}:{X+8*j+2*q+1}], v[{X+8*j+2*q}:{X+8*j+2*q+1}], v[{8+2*q}:{9+2*q}]')
        for q in range(4): a(f'v_cvt_pk_bf16_f32 v{XF+4*j+q}, v{X+8*j+2*q}, v{X+8*j+2*q+1}')
        for q in range(4): unpack(a, X+8*j+2*q, X+8*j+2*q+1, XF+4*j+q, 's12')
    a('s_cmp_lt_u32 s36, 2')
    a('s_cselect_b32 s14, 1.0, 0')
    a('s_mov_b32 s15, s14')
    b = X + 32
    a(f'v_pk_add_f32 v[8:9], v[{b}:{b+1}], v[{b+2}:{b+3}]')
    a(f'v_pk_mul_f32 v[10:11], v[{b}:{b+1}], v[{b}:{b+1}]')
    for q in range(1, 4):
        if q > 1: a(f'v_pk_add_f32 v[8:9], v[8:9], v[{b+2*q}:{b+2*q+1}]')
        a(f'v_pk_fma_f32 v[10:11], v[{b+2*q}:{b+2*q+1}], v[{b+2*q}:{b+2*q+1}], v[10:11]')
    a('v_pk_mul_f32 v[8:9], v[8:9], s[14:15]')
    a('v_pk_mul_f32 v[10:11], v[10:11], s[14:15]')
    for q in range(16):
        a(f'v_pk_add_f32 v[8:9], v[8:9], v[{X+2*q}:{X+2*q+1}]')
        a(f'v_pk_fma_f32 v[10:11], v[{X+2*q}:{X+2*q+1}], v[{X+2*q}:{X+2*q+1}], v[10:11]')
    a(f"""
    v_add_f32 v8, v8, v9
    v_add_f32 v9, v10, v11
    v_lshlrev_b32 v12, 3, v0
    ds_write_b64 v12, v[8:9] offset:{RED}
    v_lshlrev_b32 v12, 3, v88
    """)
    for j in range(5): a(f'global_store_dwordx4 v{3 if j < 4 else 7}, v[{XF+4*j}:{XF+4*j+3}], s[4:5] offset:{256*j if j < 4 else 0} sc1')
    a('s_waitcnt lgkmcnt(0)')
    a('s_barrier')
    for w in range(4): a(f'ds_read_b64 v[{16+2*w}:{17+2*w}], v12 offset:{RED+512*w}')
    MB_ = (24, 88)
    def mread(j):
        m = MB_[j % 2]; ad = 102 if j < 4 else 103; o = MT + (512*j if j < 4 else 0)
        a(f'ds_read_b128 v[{m}:{m+3}], v{ad} offset:{o}')
        a(f'ds_read_b128 v[{m+4}:{m+7}], v{ad} offset:{o+16}')
        a(f'ds_read_b128 v[{m+8}:{m+11}], v{ad} offset:{o+2304}')
        a(f'ds_read_b128 v[{m+12}:{m+15}], v{ad} offset:{o+2304+16}')
    a(f"""
    s_mul_i32 s11, s37, {18*1024}
    s_lshl_b32 s13, s36, 10
    s_add_u32 s11, s11, s13
    s_add_u32 s11, s11, {H2F}
    v_lshlrev_b32 v13, 1, v12
    v_add_u32 v13, s11, v13
    s_lshl_b32 s14, s44, 10
    v_add_u32 v14, s14, v13
    v_mov_b32 v40, v102
    v_mov_b32 v41, v103
    """)
    def mread(j):
        m = MB_[j % 2]; ad = 40 if j < 4 else 41; o = MT + (512*j if j < 4 else 0)
        a(f'ds_read_b128 v[{m}:{m+3}], v{ad} offset:{o}')
        a(f'ds_read_b128 v[{m+4}:{m+7}], v{ad} offset:{o+16}')
        a(f'ds_read_b128 v[{m+8}:{m+11}], v{ad} offset:{o+2304}')
        a(f'ds_read_b128 v[{m+12}:{m+15}], v{ad} offset:{o+2304+16}')
    mread(0); mread(1)
    a('s_waitcnt lgkmcnt(8)')
    a('v_pk_add_f32 v[16:17], v[16:17], v[18:19]')
    a('v_pk_add_f32 v[20:21], v[20:21], v[22:23]')
    a('v_pk_add_f32 v[8:9], v[16:17], v[20:21]')
    for op in ('v_permlane32_swap_b32', 'v_permlane16_swap_b32'):
        a('v_mov_b32 v10, v8')
        a('v_mov_b32 v11, v9')
        a(f'{op} v8, v10')
        a(f'{op} v9, v11')
        a('v_pk_add_f32 v[8:9], v[8:9], v[10:11]')
    a(f"""
    v_mul_f32 v8, {hx(f32(1.0/576))}, v8
    v_mul_f32 v10, {hx(f32(1.0/576))}, v9
    v_fma_f32 v10, -v8, v8, v10
    v_max_f32 v10, 0, v10
    """)
    ln_scalars(a, 8, 10)
    for j in range(5):
        m = MB_[j % 2]
        xs = [X+8*j+2*q for q in range(4)]
        for x in xs: a(f'v_pk_add_f32 v[{x}:{x+1}], v[{x}:{x+1}], v[8:9] op_sel_hi:[1,0] neg_lo:[0,1] neg_hi:[0,1]')
        for q, x in enumerate(xs): a(f'v_cvt_pk_bf16_f32 v{16+q}, v{x}, v{x+1}')
        for q, x in enumerate(xs): unpack(a, x, x+1, 16+q, 's12')
        for x in xs: a(f'v_pk_mul_f32 v[{x}:{x+1}], v[{x}:{x+1}], v[10:11] op_sel_hi:[1,0]')
        for q, x in enumerate(xs): a(f'v_cvt_pk_bf16_f32 v{16+q}, v{x}, v{x+1}')
        for q, x in enumerate(xs): unpack(a, x, x+1, 16+q, 's12')
        a(f's_waitcnt lgkmcnt({4 if j < 4 else 0})')
        for q, x in enumerate(xs): a(f'v_pk_mul_f32 v[{x}:{x+1}], v[{x}:{x+1}], v[{m+8+2*q}:{m+9+2*q}]')
        for q, x in enumerate(xs): a(f'v_cvt_pk_bf16_f32 v{16+q}, v{x}, v{x+1}')
        for q, x in enumerate(xs): unpack(a, x, x+1, 16+q, 's12')
        for q, x in enumerate(xs): a(f'v_pk_add_f32 v[{x}:{x+1}], v[{x}:{x+1}], v[{m+2*q}:{m+1+2*q}]')
        if j + 2 < 5: mread(j + 2)
        o = X + 8*j
        for q, x in enumerate(xs): a(f'v_cvt_pk_bf16_f32 v{o+q}, v{x}, v{x+1}')
        a(f'global_store_dwordx4 v{13 if j < 4 else 14}, v[{o}:{o+3}], s[4:5] sc1')
        if j < 3: a('v_add_u32 v13, 4096, v13')
    a.raw(';MARK3')
    a.branch('s_branch L_f_end')

def role_chan(a):
    RS = 528
    VL, UH, UL = 0, 32*RS, 53*RS
    TB = 74*RS
    KL, HL = 0, 4352
    YL = HL + 5376
    a(f"""
    s_load_dwordx4 s[8:11], s[0:1], {A_ARE}
    s_load_dwordx4 s[12:15], s[0:1], {A_BRE}
    s_load_dwordx4 s[16:19], s[0:1], {A_CRE}
    s_load_dwordx4 s[20:23], s[0:1], {A_LDT}
    s_and_b32 s24, s3, 7
    s_mul_i32 s24, s24, 72
    s_lshr_b32 s25, s3, 3
    s_add_u32 s37, s24, s25            ; d
    v_and_b32 v1, 127, v0              ; mode
    s_lshl_b32 s24, s37, 8
    v_lshl_add_u32 v4, v1, 1, s24
    s_lshl_b32 s24, s37, 1
    v_mov_b32 v5, s24
    s_waitcnt lgkmcnt(0)
    global_load_ushort v16, v5, s[20:21]
    global_load_ushort v10, v4, s[8:9] nt
    global_load_ushort v11, v4, s[10:11] nt
    global_load_ushort v12, v4, s[12:13] nt
    global_load_ushort v13, v4, s[14:15] nt
    global_load_ushort v14, v4, s[16:17] nt
    global_load_ushort v15, v4, s[18:19] nt
    global_load_ushort v127, v5, s[22:23]
    """)
    G0 = 116
    a('v_lshlrev_b32 v5, 3, v0')
    for i in range(0, 8, 2):
        a(f'v_add_u32 v{G0+i}, {7-i}, v5')
        a(f'v_add_u32 v{G0+i+1}, {6-i}, v5')
        a(f'v_cvt_f32_u32 v24, v{G0+i}')
        a(f'v_cvt_f32_u32 v25, v{G0+i+1}')
        a('v_cvt_pk_bf16_f32 v24, v24, v25')
        a('v_lshrrev_b32 v25, 16, v24')
        a('v_and_b32 v24, 0xffff, v24')
        a(f'v_subrev_u32 v24, {0x4300-128}, v24')
        a(f'v_subrev_u32 v25, {0x4300-128}, v25')
        if i == 0: a('v_cmp_le_u32 vcc, 16, v0')
        a(f'v_cndmask_b32 v{G0+i}, v{G0+i}, v24, vcc')
        a(f'v_cndmask_b32 v{G0+i+1}, v{G0+i+1}, v25, vcc')
        a(f'v_lshlrev_b32 v{G0+i}, 1, v{G0+i}')
        a(f'v_lshlrev_b32 v{G0+i+1}, 1, v{G0+i+1}')
    TW = 112
    a(f"""
    v_and_b32 v2, 15, v0               ; n / m
    v_bfe_u32 v3, v0, 4, 3             ; G = 4*(w&1) + g
    v_lshrrev_b32 v24, 7, v0
    v_lshl_add_u32 v24, v24, 4, v2     ; j
    v_sub_u32 v25, 4, v3
    v_med3_i32 v25, v25, 0, 3
    v_lshlrev_b32 v24, v25, v24
    v_min_u32 v25, 6, v3
    v_lshlrev_b32 v25, 7, v25
    v_cmp_eq_u32 vcc, 1, v3
    v_cndmask_b32 v25, v25, 4, vcc
    v_add_u32 v24, v24, v25
    v_cmp_le_u32 vcc, 4, v3
    v_cndmask_b32 v25, 1, 32, vcc      ; s1
    v_cmp_le_u32 vcc, 3, v3
    v_cndmask_b32 v26, 2, 64, vcc      ; s2
    v_lshlrev_b32 v{TW}, 1, v24
    v_lshl_add_u32 v{TW+1}, v25, 1, v{TW}
    v_lshl_add_u32 v{TW+2}, v26, 1, v{TW}
    v_lshl_add_u32 v{TW+3}, v26, 1, v{TW+1}
    v_bfe_u32 v3, v0, 4, 2             ; g
    v_bfe_u32 v24, v0, 6, 1
    v_lshl_add_u32 v24, v24, 4, v2
    v_min_u32 v24, 20, v24
    v_mul_u32_u24 v110, {RS}, v24
    v_lshl_add_u32 v110, v3, 4, v110
    v_lshrrev_b32 v24, 7, v0
    v_lshl_add_u32 v24, v24, 4, v2
    v_mul_u32_u24 v111, {RS}, v24
    v_lshl_add_u32 v111, v3, 4, v111
    v_lshlrev_b32 v4, 2, v1
    s_mov_b32 s12, 0xffff0000
    s_waitcnt vmcnt(5)
    """)
    a.raw(';MARK0')
    for r in (16, 10, 11): a(f'v_lshlrev_b32 v{r}, 16, v{r}')
    a(f'v_mul_f32 v16, {hx(LOG2E)}, v16')
    a('v_exp_f32 v16, v16')
    rnd1(a, 16)
    a(f"""
    v_mul_f32 v10, v16, v10
    v_mul_f32 v11, v16, v11
    v_mul_f32 v10, {hx(LOG2E)}, v10    ; alpha
    v_mul_f32 v11, {hx(INV2PI)}, v11   ; beta
    s_cmp_ge_u32 s36, 2
    """)
    a.branch('s_cbranch_scc1 L_ch_u')
    def vput(row, p):
        t = 60 + (row % 4)
        a(f'v_cvt_pk_bf16_f32 v{t}, v{p}, v{p+1}')
        a(f'ds_write_b32 v4, v{t} offset:{VL + row*RS}')
    A_, B_ = 32, 40
    cexps(a, [(A_+2, 8, 24), (A_+4, 16, 25), (A_+6, 24, 26), (48, 32, 27)], 10, 11)
    a(f'v_mov_b32 v{A_}, 1.0')
    a(f'v_mov_b32 v{A_+1}, 0')
    cur, nxt = A_, B_
    for step in range(8):
        if step < 7: cmuls(a, [(nxt+2*c, cur+2*c, 48) for c in range(4)])
        for c in range(4): vput(4*step + c, cur+2*c)
        cur, nxt = nxt, cur
    a.branch('s_branch L_ch_join')
    a.label('L_ch_u')
    tcount = [0]
    def uputs(items):
        ts = []
        for row, p in items:
            t = 80 + 4*(tcount[0] % 6); tcount[0] += 1; ts.append(t)
        for (row, p), t in zip(items, ts): a(f'v_cvt_pk_bf16_f32 v{t+2}, v{p}, -v{p+1}')
        for (row, p), t in zip(items, ts): a(f'ds_write_b32 v4, v{t+2} offset:{UH + row*RS}'); unpack(a, t, t+1, t+2, 's12')
        for (row, p), t in zip(items, ts): a(f'v_pk_add_f32 v[{t}:{t+1}], v[{p}:{p+1}], v[{t}:{t+1}] neg_lo:[0,1] neg_hi:[1,1]')
        for (row, p), t in zip(items, ts): a(f'v_cvt_pk_bf16_f32 v{t+3}, v{t}, v{t+1}')
        for (row, p), t in zip(items, ts): a(f'ds_write_b32 v4, v{t+3} offset:{UL + row*RS}')
    W1, W2, W4, E1, E2 = 24, 26, 28, 30, 32
    U = lambda r: 34 + 2*r
    cexps(a, [(W1, 1, 76), (W2, 2, 77), (W4, 4, 78), (E1, 256, 79), (E2, 512, 80)], 10, 11)
    a('s_waitcnt vmcnt(1)')
    for r in range(12, 16): a(f'v_lshlrev_b32 v{r}, 16, v{r}')
    a('v_pk_mul_f32 v[12:13], v[12:13], v[16:17] op_sel_hi:[1,0]')
    cmul(a, U(0), 14, 12)
    cmuls(a, [(U(1), U(0), W1), (U(2), U(0), W2), (U(4), U(0), W4), (U(8), U(0), E1), (U(12), U(0), E2)])
    uputs([(0, U(0))])
    cmuls(a, [(U(3), U(1), W2), (U(5), U(1), W4), (U(6), U(2), W4), (U(9), U(2), E1), (U(10), U(4), E1), (U(13), U(4), E2), (U(14), U(8), E2), (U(16), U(12), E2)])
    uputs([(1, U(1)), (2, U(2)), (4, U(4))])
    uputs([(8, U(8)), (12, U(12))])
    cmuls(a, [(U(7), U(3), W4), (U(11), U(6), E1), (U(15), U(10), E2), (U(17), U(14), E2), (U(18), U(16), E2)])
    uputs([(3, U(3)), (5, U(5)), (6, U(6))])
    uputs([(9, U(9)), (10, U(10)), (13, U(13))])
    cmuls(a, [(U(19), U(17), E2), (U(20), U(18), E2)])
    uputs([(14, U(14)), (16, U(16)), (7, U(7))])
    uputs([(11, U(11)), (15, U(15)), (17, U(17))])
    uputs([(18, U(18)), (19, U(19)), (20, U(20))])
    a.label('L_ch_join')
    get_nonce(a, 'ch', 108)
    a('s_waitcnt vmcnt(0) lgkmcnt(0)')
    a('s_barrier')
    FR = 24
    def fread(s):
        r = FR + 12*(s % 6)
        a(f'ds_read_b128 v[{r}:{r+3}], v111 offset:{VL + 64*s}')
        a(f'ds_read_b128 v[{r+4}:{r+7}], v110 offset:{UH + 64*s}')
        a(f'ds_read_b128 v[{r+8}:{r+11}], v110 offset:{UL + 64*s}')
    for s in range(5): fread(s)
    for s in range(8):
        if s + 5 < 8: fread(s + 5)
        a(f's_waitcnt lgkmcnt({3*min(5, 7-s)})')
        r = FR + 12*(s % 6)
        for acc, off in ((8, 4), (12, 8)):
            c = '0' if s == 0 else f'v[{acc}:{acc+3}]'
            a(f'v_mfma_f32_16x16x32_bf16 v[{acc}:{acc+3}], v[{r+off}:{r+off+3}], v[{r}:{r+3}], {c}')
    a(f"""
    v_lshlrev_b32 v1, 4, v0
    v_lshrrev_b32 v96, 1, v0
    v_mul_u32_u24 v96, 18432, v96
    v_and_b32 v97, 1, v0
    v_lshl_add_u32 v96, v97, 4, v96
    s_lshl_b32 s24, s37, 5
    s_add_u32 s24, s24, {N1T}
    v_add_u32 v96, s24, v96
    v_and_b32 v4, 63, v0
    v_min_u32 v97, 11, v4
    v_lshrrev_b32 v98, 2, v97
    v_and_b32 v97, 3, v97
    v_mul_u32_u24 v98, {576*4}, v98
    v_mul_u32_u24 v97, {3456*4}, v97
    s_lshl_b32 s24, s37, 2
    v_add3_u32 v97, v97, v98, s24
    v_min_u32 v98, 58, v4
    v_lshlrev_b32 v98, 4, v98
    v_add_u32 v98, {FL1}, v98
    v_pk_add_f32 v[8:9], v[8:9], v[12:13]
    v_pk_add_f32 v[10:11], v[10:11], v[14:15]
    v_cvt_pk_bf16_f32 v8, v8, v9
    v_cvt_pk_bf16_f32 v9, v10, v11
    ds_write_b16 v{TW}, v8 offset:{TB}
    ds_write_b16_d16_hi v{TW+1}, v8 offset:{TB}
    ds_write_b16 v{TW+2}, v9 offset:{TB}
    ds_write_b16_d16_hi v{TW+3}, v9 offset:{TB}
    """)
    a('s_waitcnt lgkmcnt(0)')
    a('s_barrier')
    for i in range(8): a(f'ds_read_u16 v{16+i}, v{G0+i} offset:{TB}')
    a.raw(';MARK1')
    poll(a, 'ch', FL1, N_LN + N_GV, 32)
    a(f"""
    global_load_dword v7, v97, s[4:5] offset:{MODP} sc1
    global_load_dwordx4 v[8:11], v96, s[4:5] sc1
    s_waitcnt lgkmcnt(0)
    """)
    for i in range(4): a(f'v_lshl_or_b32 v{12+i}, v{17+2*i}, 16, v{16+2*i}')
    a(f"""
    ds_write_b128 v1, v[12:15] offset:{KL+256}
    v_mov_b32 v20, 0
    v_mov_b32 v21, 0
    v_mov_b32 v22, 0
    v_mov_b32 v23, 0
    v_lshlrev_b32 v17, 4, v2
    ds_write_b128 v17, v[20:23] offset:{KL}
    v_mov_b32 v18, {HL}
    ds_write_b128 v18, v[20:23]
    v_lshrrev_b32 v18, 4, v0           ; n
    v_bfe_u32 v19, v0, 2, 2            ; g
    v_lshl_add_u32 v24, v19, 4, v18
    v_mul_u32_u24 v24, 84, v24
    v_and_b32 v25, 3, v0
    v_lshl_add_u32 v24, v25, 4, v24
    v_add_u32 v24, {HL+16}, v24
    v_lshrrev_b32 v26, 2, v0
    v_add_u32 v26, 1, v26
    v_lshrrev_b32 v27, 2, v26
    v_and_b32 v26, 3, v26
    v_lshl_add_u32 v26, v26, 4, v27
    v_mul_u32_u24 v26, 84, v26
    v_add_u32 v26, {HL}, v26
    v_cmp_eq_u32 s[18:19], 3, v25
    v_cmp_ne_u32 vcc, 255, v0
    s_and_b64 s[18:19], vcc, s[18:19]
    v_lshlrev_b32 v16, 16, v127        ; Dskip
    v_mul_u32_u24 v18, 84, v4
    s_lshl_b32 s24, s36, 2
    s_add_u32 s24, s24, {HL}
    v_add_u32 v18, s24, v18
    v_lshlrev_b32 v25, 2, v3
    v_sub_u32 v25, v2, v25
    v_add_u32 v25, 13, v25
    v_lshlrev_b32 v25, 4, v25
    v_mul_u32_u24 v29, 68, v2
    v_lshl_add_u32 v29, v3, 4, v29
    v_add_u32 v29, s36, v29
    v_lshlrev_b32 v29, 2, v29
    v_cmp_ne_u32 vcc, 8, v2
    v_cndmask_b32 v27, 0, 1.0, vcc
    s_waitcnt vmcnt(1)
    v_add_f32_dpp v7, v7, v7 quad_perm:[1,0,3,2] row_mask:0xf bank_mask:0xf
    v_add_f32_dpp v7, v7, v7 quad_perm:[2,3,0,1] row_mask:0xf bank_mask:0xf
    """)
    rnd1(a, 7)
    a('v_add_f32 v28, 1.0, v7')
    rnd1(a, 28)
    a(f"""
    v_readlane_b32 s26, v7, 0          ; sa
    v_readlane_b32 s28, v28, 4         ; 1+ca
    v_readlane_b32 s30, v7, 8          ; ga
    s_waitcnt vmcnt(0)
    """)
    H = 32
    for q in range(4): unpack(a, H+2*q, H+2*q+1, 8+q, 's12')
    for q in range(4): a(f'v_pk_mul_f32 v[{H+2*q}:{H+2*q+1}], v[{H+2*q}:{H+2*q+1}], s[28:29] op_sel_hi:[1,0]')
    for q in range(4): a(f'v_cvt_pk_bf16_f32 v{8+q}, v{H+2*q}, v{H+2*q+1}')
    for q in range(4): unpack(a, H+2*q, H+2*q+1, 8+q, 's12')
    for q in range(4): a(f'v_pk_add_f32 v[{H+2*q}:{H+2*q+1}], v[{H+2*q}:{H+2*q+1}], s[26:27] op_sel_hi:[1,0]')
    for q in range(4): a(f'v_cvt_pk_bf16_f32 v{8+q}, v{H+2*q}, v{H+2*q+1}')
    a(f"""
    ds_write2_b32 v24, v8, v9 offset0:0 offset1:1
    ds_write2_b32 v24, v10, v11 offset0:2 offset1:3
    s_mov_b64 exec, s[18:19]
    ds_write2_b32 v26, v8, v9 offset0:0 offset1:1
    ds_write2_b32 v26, v10, v11 offset0:2 offset1:3
    s_mov_b64 exec, -1
    s_waitcnt lgkmcnt(0)
    s_barrier
    """)
    a.raw(';MARK2')
    V0, E, O, P = 31, 32, 48, 64
    AF, NAF, Z = 80, 6, 104
    a(f'ds_read_b32 v{V0}, v18')
    for q in range(8): a(f'ds_read2_b32 v[{E+2*q}:{E+2*q+1}], v18 offset0:{1+2*q} offset1:{2+2*q}')
    steps = [(t, u) for t in range(15, -1, -1) for u in range(4)]
    def aload(k):
        t, u = steps[k]
        r = AF + 4*(k % NAF)
        a(f'ds_read_b128 v[{r}:{r+3}], v25 offset:{KL + 256*t + 16*(3-u)}')
    PD = 5
    for k in range(PD): aload(k)
    a(f's_waitcnt lgkmcnt({PD})')
    for j in range(16): a(f'v_alignbit_b32 v{O+j}, v{E+j}, v{E+j-1}, 16')
    for j in range(16): a(f'v_mov_b32 v{P+j}, v{O+j}')
    for j in range(16): a(f'v_mov_b32_dpp v{P+j}, v{E+j} row_shr:8 row_mask:0xf bank_mask:0xc')
    zi, prev, merge = 0, None, []
    for k, (t, u) in enumerate(steps):
        if k + PD < len(steps): aload(k + PD)
        a(f's_waitcnt lgkmcnt({min(PD, len(steps) - 1 - k)})')
        r = AF + 4*(k % NAF)
        z = Z + 8*(zi % 3)
        if t >= 8:
            c = '0' if u == 0 else f'v[{z}:{z+3}]'
            a(f'v_mfma_f32_16x16x32_bf16 v[{z}:{z+3}], v[{r}:{r+3}], v[{P+4*u}:{P+4*u+3}], {c}')
        else:
            for (zz, B) in ((z, O), (z+4, E)):
                c = '0' if u == 0 else f'v[{zz}:{zz+3}]'
                a(f'v_mfma_f32_16x16x32_bf16 v[{zz}:{zz+3}], v[{r}:{r+3}], v[{B+4*u}:{B+4*u+3}], {c}')
        if u == 2 and merge:
            for x in merge: a(x)
            merge = []
        if u == 3:
            if prev is None: merge = []
            elif t >= 8:
                merge = [f'v_fmac_f32_dpp v{z+q}, v{prev+q}, v27 row_shr:1 row_mask:0xf bank_mask:0xf bound_ctrl:0' for q in range(4)]
            elif t == 7:
                merge = []
                for q in range(4): merge.append(f'v_mov_b32_dpp v{prev+4+q}, v{prev+q} row_shl:8 row_mask:0xf bank_mask:0xf bound_ctrl:0')
                for q in range(4): merge.append(f'v_mov_b32_dpp v{prev+q}, v20 row_shr:1 row_mask:0xf bank_mask:0xc bound_ctrl:0')
                for q in range(8): merge.append(f'v_add_f32_dpp v{z+q}, v{prev+q}, v{z+q} row_shr:1 row_mask:0xf bank_mask:0xf bound_ctrl:0')
            else:
                merge = [f'v_add_f32_dpp v{z+q}, v{prev+q}, v{z+q} row_shr:1 row_mask:0xf bank_mask:0xf bound_ctrl:0' for q in range(8)]
            prev = z
            zi += 1
    H = P
    for q in range(4): unpack(a, H+2*q, H+2*q+1, 8+q, 's12')
    for q in range(4): a(f'v_pk_mul_f32 v[{H+2*q}:{H+2*q+1}], v[{H+2*q}:{H+2*q+1}], v[16:17] op_sel_hi:[1,0]')
    for x in merge: a(x)
    for q in range(4):
        a(f'v_cvt_pk_bf16_f32 v{8+q}, v{prev+q}, v{prev+4+q}')
        a(f'ds_write_b32 v29, v{8+q} offset:{YL+16*q}')
    for q in range(4): a(f'v_cvt_pk_bf16_f32 v{12+q}, v{H+2*q}, v{H+2*q+1}')
    for q in range(4): unpack(a, H+2*q, H+2*q+1, 12+q, 's12')
    a(f"""
    v_lshrrev_b32 v18, 4, v0
    v_lshl_add_u32 v18, v18, 4, v1
    s_lshl_b32 s24, s37, 12
    s_add_u32 s24, s24, {GT}
    v_add_u32 v2, s24, v1
    s_lshl_b32 s43, s37, 6
    s_add_u32 s43, s43, {FL2}
    s_waitcnt lgkmcnt(0)
    s_barrier
    ds_read_b128 v[8:11], v18 offset:{YL}
    s_waitcnt lgkmcnt(0)
    """)
    Y = 32
    for q in range(4): unpack(a, Y+2*q, Y+2*q+1, 8+q, 's12')
    for q in range(4): a(f'v_pk_add_f32 v[{Y+2*q}:{Y+2*q+1}], v[{Y+2*q}:{Y+2*q+1}], v[{H+2*q}:{H+2*q+1}]')
    for q in range(4): a(f'v_cvt_pk_bf16_f32 v{8+q}, v{Y+2*q}, v{Y+2*q+1}')
    for q in range(4): unpack(a, Y+2*q, Y+2*q+1, 8+q, 's12')
    for q in range(4): a(f'v_pk_mul_f32 v[{Y+2*q}:{Y+2*q+1}], v[{Y+2*q}:{Y+2*q+1}], s[30:31] op_sel_hi:[1,0]')
    for q in range(4): a(f'v_cvt_pk_bf16_f32 v{8+q}, v{Y+2*q}, v{Y+2*q+1}')
    a('global_store_dwordx4 v2, v[8:11], s[4:5] sc1')
    a.raw(';MARK3')
    publish(a, 'ch', 43, 30)
    a.branch('s_branch L_f_end')

def kf(opt={}):
    a = Asm()
    b1, b2, b3, tot = N_LN, N_LN+N_GV, N_LN+N_GV+N_CH, N_LN+N_GV+N_CH+N_XR
    a(f"""
    s_cmp_ge_u32 s2, {tot}
    s_cbranch_scc1 L_f_end
    s_load_dwordx2 s[4:5], s[0:1], {D_WS}
    s_load_dwordx2 s[38:39], s[0:1], {D_DBG}
    """)
    if FO.get('pf'):
        a(f"""
        s_cmp_ge_u32 s2, {FO['pf']}
        s_cbranch_scc1 L_f_nopf
        s_getpc_b64 s[6:7]
        v_lshlrev_b32 v1, 7, v0
        global_load_dword v126, v1, s[6:7]
        v_add_u32 v1, 32768, v1
        global_load_dword v126, v1, s[6:7]
        """)
        a.label('L_f_nopf')
    a(f"""
    v_lshrrev_b32 v1, 6, v0
    s_nop 0
    v_readfirstlane_b32 s36, v1
    s_sub_u32 s3, s2, {b2}
    s_cmp_ge_u32 s2, {b3}
    s_cbranch_scc1 L_f_xr
    s_cmp_ge_u32 s2, {b2}
    s_cbranch_scc1 L_f_chan
    s_sub_u32 s3, s2, {b1}
    s_cmp_ge_u32 s2, {b1}
    s_cbranch_scc1 L_f_gemv
    s_mov_b32 s3, s2
    """)
    role_ln(a)
    a.label('L_f_xr')
    a(f"""
    s_sub_u32 s42, s2, {b3}
    s_lshl_b32 s42, s42, 2
    s_add_u32 s42, s42, s36
    s_add_u32 s42, s42, 296
    s_branch L_wd
    """)
    a.label('L_f_chan'); role_chan(a)
    a.label('L_f_gemv'); role_gemv(a)
    a.label('L_f_end')
    return ('front_kernel', a.text(), dict(vgpr=128, sgpr=48, accum=128), tot, 256, 40960)
```

```python
from asmlib import Asm
from gen import *
from front import cmul, cmuls, cexps

NP = 6
FL1 = 0x15000
GFL = 0x260000
MODF = 0x18000
NFL1 = 182
SPIN = 400000
def P(off): return f's[{44+off//4}:{45+off//4}]'
WS, DBG = P(D_WS), P(D_DBG)
NTASK = 2592

def nonce_issue(a, vt):
    a(f'v_mov_b32 v{vt}, 0')
    a(f'global_load_dword v{vt+1}, v{vt}, {DBG} sc1')
def nonce_get(a, tag, vt):
    a(f's_mov_b32 s41, {SPIN}')
    a.label(f'L_non_{tag}')
    a(f"""
    v_readfirstlane_b32 s40, v{vt+1}
    s_sub_u32 s41, s41, 1
    s_cmp_lg_u32 s40, 0
    """)
    a.branch(f's_cbranch_scc1 L_non_{tag}_ok')
    a('s_cmp_eq_u32 s41, 0')
    a.branch(f's_cbranch_scc1 L_non_{tag}_ok')
    a(f'global_load_dword v{vt+1}, v{vt}, {DBG} sc1')
    a('s_waitcnt vmcnt(0)')
    a.branch(f's_branch L_non_{tag}')
    a.label(f'L_non_{tag}_ok')
def publish_exit(a, vt, other='L_f_end'):
    a(f"""
    s_lshl_b32 s43, s3, 6
    s_add_u32 s43, s43, {FL1}
    v_mov_b32 v{vt}, s43
    v_mov_b32 v{vt+1}, s40
    s_cmp_lg_u32 s36, 0
    s_waitcnt vmcnt(0)
    s_barrier
    s_cbranch_scc1 {other}
    s_mov_b64 exec, 1
    global_store_dword v{vt}, v{vt+1}, {WS} sc1
    """)
    a.raw(';MARK2')
    a.branch('s_branch L_f_end')

def rep_setup(a, va, vr):
    a(f"""
    v_and_b32 v{vr}, 63, v0
    v_lshrrev_b32 v{vr+1}, 3, v{vr}
    v_mul_u32_u24 v{va}, 9216, v{vr+1}
    v_and_b32 v{vr+1}, 2, v{vr+1}            ; 2*((r8>>1)&1)
    v_and_b32 v{vr+2}, 7, v{vr}
    v_xor_b32 v{vr+2}, v{vr+2}, v{vr+1}
    v_lshl_add_u32 v{va}, v{vr+2}, 4, v{va}
    v_xor_b32 v{va+1}, 64, v{va}
    ; reader: g*1024 + (i>>2)*128 + (f*32) + (i&3)*8, f = 2(g&1) + ((i>>3)&1)
    v_lshrrev_b32 v{vr+1}, 4, v{vr}
    v_lshlrev_b32 v{vr+1}, 10, v{vr+1}
    v_bfe_u32 v{vr+2}, v{vr}, 2, 2
    v_lshl_add_u32 v{vr+1}, v{vr+2}, 7, v{vr+1}
    v_bfe_u32 v{vr+2}, v{vr}, 3, 2
    v_lshl_add_u32 v{vr+1}, v{vr+2}, 5, v{vr+1}
    v_and_b32 v{vr+2}, 3, v{vr}
    v_lshl_add_u32 v{vr}, v{vr+2}, 3, v{vr+1}
    """)
def rep_decode(a):
    a(f"""
    s_and_b32 s26, s42, 1              ; mat
    s_lshr_b32 s27, s42, 1
    s_mul_i32 s32, s27, 3641
    s_lshr_b32 s32, s32, 18            ; s = t/72
    s_mul_i32 s33, s32, 72
    s_sub_u32 s27, s27, s33            ; group
    s_cmp_eq_u32 s26, 0
    s_cselect_b32 s28, s{44+B_WG//4}, s{44+B_WU//4}
    s_cselect_b32 s29, s{45+B_WG//4}, s{45+B_WU//4}
    s_mov_b32 s30, {576*9216}
    s_mov_b32 s31, 0x20000
    s_mul_i32 s33, s27, {4*36}
    s_add_u32 s33, s33, s26
    s_lshl_b32 s26, s32, 1
    s_add_u32 s33, s33, s26
    s_lshl_b32 s33, s33, 10
    s_add_u32 s33, s33, {WGU}
    s_mul_i32 s32, s32, {32*9216}
    s_lshl_b32 s27, s27, 7
    s_add_u32 s32, s32, s27
    """)
def rep_issue(a, va, slds):
    for b in range(4):
        a(f's_add_u32 m0, s{slds}, {1024*b}')
        if b: a(f's_add_u32 s32, s32, {8*9216}')
        a(f'buffer_load_dwordx4 v{va+(b&1)}, s[28:31], s32 offen nt lds')
def rep_finish(a, vr, slds, O, vt, sdst=33):
    a(f'v_add_u32 v{vt}, s{slds}, v{vr}')
    for t in range(4):
        if t: a(f'v_xor_b32 v{vt+t}, {32*t}, v{vt}')
    for t in range(4):
        for h in range(2): a(f'ds_read_b64_tr_b16 v[{O+4*t+2*h}:{O+4*t+2*h+1}], v{vt+t} offset:{512*h}')
    a(f'v_and_b32 v{vt+4}, 63, v0')
    a(f'v_lshlrev_b32 v{vt+4}, 4, v{vt+4}')
    a(f'v_add_u32 v{vt+4}, s{sdst}, v{vt+4}')
    for t in range(4):
        a(f's_waitcnt lgkmcnt({6-2*t})')
        a(f'global_store_dwordx4 v{vt+4}, v[{O+4*t}:{O+4*t+3}], {WS} sc1')
        if t < 3: a(f'v_add_u32 v{vt+4}, 36864, v{vt+4}')

def gemv_pro(a):
    a(f"""
    s_mul_i32 s12, s10, 96
    v_lshrrev_b32 v1, 4, v0
    v_and_b32 v2, 15, v0               ; c16
    v_add_u32 v3, s12, v1
    v_mul_u32_u24 v5, 6912, v3
    s_lshl_b32 s14, s11, 8
    v_lshl_add_u32 v5, v2, 4, v5
    v_add_u32 v5, s14, v5
    v_min_u32 v4, 5, v2
    v_lshl_add_u32 v4, v4, 4, v3
    v_lshlrev_b32 v4, 1, v4
    s_mov_b32 s13, {16*6912}
    s_waitcnt lgkmcnt(0)
    global_load_ushort v44, v4, {P(C_C)}
    """)
    for i in range(6):
        a(f'global_load_dwordx4 v[{8+4*i}:{11+4*i}], v5, {P(W_MOD)} nt')
        if i < 5: a(f'v_add_u32 v5, s13, v5')
def gemv_body(a):
    W0, C0, ACC, T = 8, 44, 54, 62
    a(f"""
    s_mov_b32 s15, 0xffff0000
    v_lshlrev_b32 v6, 9, v1
    v_lshl_add_u32 v6, v2, 5, v6
    v_and_b32 v7, 127, v0
    v_lshlrev_b32 v7, 2, v7
    s_mul_i32 s12, s10, {3456*4}
    s_lshl_b32 s14, s11, 9
    s_add_u32 s12, s12, s14
    v_add_u32 v3, s12, v7
    s_waitcnt vmcnt(6)
    v_lshlrev_b32 v53, 16, v44
    v_mul_f32 v{T}, {hx(LOG2E|0x80000000)}, v53
    v_exp_f32 v{T}, v{T}
    v_add_f32 v{T}, 1.0, v{T}
    v_rcp_f32 v{T}, v{T}
    v_mul_f32 v53, v53, v{T}
    """)
    rnd1(a, 53)
    for i in range(6): a(f'v_mov_b32_dpp v{36+2*i}, v53 row_newbcast:{i} row_mask:0xf bank_mask:0xf')
    for i in range(6):
        a(f's_waitcnt vmcnt({5-i})')
        if i == 5:
            a.raw(';MARK0')
            nonce_issue(a, 32)
        c = 36 + 2*i
        sel = 'op_sel_hi:[1,0,1]'
        for q in range(4): unpack(a, T+2*q, T+2*q+1, W0+4*i+q, 's15')
        for q in range(4):
            if i == 0: a(f'v_pk_mul_f32 v[{ACC+2*q}:{ACC+2*q+1}], v[{T+2*q}:{T+2*q+1}], v[{c}:{c+1}] op_sel_hi:[1,0]')
            else: a(f'v_pk_fma_f32 v[{ACC+2*q}:{ACC+2*q+1}], v[{T+2*q}:{T+2*q+1}], v[{c}:{c+1}], v[{ACC+2*q}:{ACC+2*q+1}] {sel}')
    a(f"""
    ds_write_b128 v6, v[{ACC}:{ACC+3}]
    ds_write_b128 v6, v[{ACC+4}:{ACC+7}] offset:16
    s_waitcnt lgkmcnt(0)
    s_barrier
    """)
    for j in range(8): a(f'ds_read2st64_b32 v[{8+2*j}:{9+2*j}], v7 offset0:{4*j} offset1:{4*j+2}')
    a('s_waitcnt lgkmcnt(0)')
    for st in (8, 4, 2):
        for j in range(0, st, 2): a(f'v_pk_add_f32 v[{8+j}:{9+j}], v[{8+j}:{9+j}], v[{8+j+st}:{9+j+st}]')
    a('v_add_f32 v8, v8, v9')
    a('s_cmp_ge_u32 s36, 2')
    a.branch('s_cbranch_scc1 L_gv_nost')
    a(f'global_store_dword v3, v8, {WS} offset:{MODP} sc1')
    a.label('L_gv_nost')
    a.raw(';MARK1')

def ln_pro(a, opt):
    a(f"""
    s_and_b32 s37, s3, 1
    s_lshl_b32 s37, s37, 2
    s_bfe_u32 s11, s3, 0x20003
    s_add_u32 s37, s37, s11
    s_lshl_b32 s37, s37, 4
    s_and_b32 s11, s3, 6
    s_lshl_b32 s11, s11, 1
    s_add_u32 s37, s37, s11
    s_lshr_b32 s11, s3, 5
    s_add_u32 s37, s37, s11
    v_lshrrev_b32 v1, 4, v0
    v_and_b32 v2, 15, v0
    s_lshl_b32 s11, s37, 4
    v_add_u32 v3, s11, v1
    v_mul_u32_u24 v3, 1152, v3
    v_lshl_add_u32 v3, v2, 3, v3
    s_waitcnt lgkmcnt(0)
    """)
    for i in range(9): a(f'global_load_dwordx2 v[{8+2*i}:{9+2*i}], v3, {P(A_U)} offset:{128*i} {opt.get("xnt", "")}')
def ln_body(a):
    ST = LN1_STRIDE
    P0, X0 = 8, 28
    a(f"""
    v_mul_u32_u24 v4, {ST}, v1
    v_lshl_add_u32 v4, v2, 3, v4
    s_mov_b32 s12, 0xffff0000
    v_bfe_u32 v5, v0, 4, 1
    v_lshlrev_b32 v5, 3, v5
    v_lshrrev_b32 v6, 2, v2
    v_add_u32 v5, v5, v6
    v_mul_u32_u24 v5, {ST}, v5
    v_and_b32 v6, 3, v0
    v_lshl_add_u32 v5, v6, 3, v5
    v_bfe_u32 v6, v0, 5, 1
    v_lshl_add_u32 v5, v6, 5, v5
    s_lshl_b32 s13, s36, 6
    v_add_u32 v5, s13, v5
    s_add_u32 s16, s36, 16
    s_min_u32 s16, s16, 17
    s_sub_u32 s16, s16, s36
    s_lshl_b32 s14, s16, 6
    v_add_u32 v76, s14, v5
    v_lshl_add_u32 v7, v6, 4, v2
    v_lshlrev_b32 v7, 5, v7
    v_bfe_u32 v6, v0, 4, 1
    v_lshl_add_u32 v7, v6, 4, v7
    s_mul_i32 s11, s37, 18432
    s_lshl_b32 s13, s36, 10
    s_add_u32 s11, s11, s13
    s_add_u32 s11, s11, {N1T}
    v_add_u32 v7, s11, v7
    s_lshl_b32 s14, s16, 10
    v_add_u32 v77, s14, v7
    v_add_u32 v78, 4096, v7
    v_add_u32 v79, 8192, v7
    v_add_u32 v80, 12288, v7
    """)
    for i in range(9):
        a(f's_waitcnt vmcnt({8-i})')
        if i == 8: nonce_issue(a, 82)
        for q in range(2): unpack(a, X0+4*i+2*q, X0+4*i+2*q+1, P0+2*i+q, 's12')
        for q in range(2):
            x = X0+4*i+2*q
            if i == 0:
                a(f'v_pk_mul_f32 v[{68+2*q}:{69+2*q}], v[{x}:{x+1}], v[{x}:{x+1}]')
            else:
                a(f'v_pk_fma_f32 v[{68+2*q}:{69+2*q}], v[{x}:{x+1}], v[{x}:{x+1}], v[{68+2*q}:{69+2*q}]')
                s0 = X0+2*q if i == 1 else 64+2*q
                a(f'v_pk_add_f32 v[{64+2*q}:{65+2*q}], v[{s0}:{s0+1}], v[{x}:{x+1}]')
    a.raw(';MARK0')
    a("""
    v_pk_add_f32 v[64:65], v[64:65], v[66:67]
    v_pk_add_f32 v[68:69], v[68:69], v[70:71]
    v_add_f32 v64, v64, v65
    v_add_f32 v66, v68, v69
    """)
    for sh in (8, 4, 2, 1):
        a(f'v_add_f32_dpp v64, v64, v64 row_ror:{sh} row_mask:0xf bank_mask:0xf')
        a(f'v_add_f32_dpp v66, v66, v66 row_ror:{sh} row_mask:0xf bank_mask:0xf')
    a(f"""
    v_mul_f32 v64, {hx(f32(1.0/576))}, v64
    v_mul_f32 v66, {hx(f32(1.0/576))}, v66
    v_fma_f32 v66, -v64, v64, v66
    v_max_f32 v66, 0, v66
    v_add_f32 v66, {hx(f32(1e-5))}, v66
    v_rsq_f32 v66, v66
    v_mul_f32 v68, -v64, v66
    """)
    for i in range(9):
        xs = [(X0+4*i+2*q, P0+2*i+q) for q in range(2)]
        for x, p in xs: a(f'v_pk_fma_f32 v[{x}:{x+1}], v[{x}:{x+1}], v[66:67], v[68:69] op_sel_hi:[1,0,0]')
        for x, p in xs: a(f'v_cvt_pk_bf16_f32 v{p}, v{x}, v{x+1}')
        a(f'ds_write_b64 v4, v[{P0+2*i}:{P0+2*i+1}] offset:{128*i}')
    a('s_waitcnt lgkmcnt(0)')
    a('s_barrier')
    for j in range(5):
        for q in range(2):
            a(f'ds_read_b64_tr_b16 v[{P0+4*j+2*q}:{P0+4*j+2*q+1}], v{5 if j < 4 else 76} offset:{(256*j if j < 4 else 0) + 4*ST*q}')
    for j in range(5):
        a(f's_waitcnt lgkmcnt({8-2*j})')
        a(f'global_store_dwordx4 v{(7, 78, 79, 80, 77)[j]}, v[{P0+4*j}:{P0+4*j+3}], {WS} sc1')
    a.raw(';MARK1')
    a('s_waitcnt vmcnt(5)')
    nonce_get(a, 'ln', 82)
    publish_exit(a, 30, 'L_ln_touch')
    a.label('L_ln_touch')
    a(f"""
    v_subrev_u32 v1, 64, v0
    v_min_u32 v1, 143, v1
    v_lshlrev_b32 v1, 7, v1
    s_mul_i32 s11, s37, 18432
    v_add_u32 v1, s11, v1
    global_load_dword v2, v1, {P(A_U)}
    s_waitcnt vmcnt(0)
    """)
    a.branch('s_branch L_f_end')

def chan_pro(a):
    a(f"""
    s_and_b32 s24, s3, 7
    s_mul_i32 s24, s24, 24
    s_lshr_b32 s25, s3, 3
    s_add_u32 s24, s24, s25
    s_mul_i32 s24, s24, 3
    s_add_u32 s37, s24, s35
    s_sub_u32 s37, s37, 1              ; d
    v_and_b32 v1, 127, v0              ; mode
    s_lshl_b32 s24, s37, 8
    v_lshl_add_u32 v4, v1, 1, s24
    s_lshl_b32 s24, s37, 1
    v_mov_b32 v5, s24
    s_waitcnt lgkmcnt(0)
    global_load_ushort v16, v5, {P(A_LDT)}
    global_load_ushort v10, v4, {P(A_ARE)} nt
    global_load_ushort v11, v4, {P(A_AIM)} nt
    global_load_ushort v12, v4, {P(A_BRE)} nt
    global_load_ushort v13, v4, {P(A_BIM)} nt
    global_load_ushort v14, v4, {P(A_CRE)} nt
    global_load_ushort v15, v4, {P(A_CIM)} nt
    global_load_ushort v7, v5, {P(A_DSK)}
    """)
def chan_body(a, opt):
    RS = 528
    VL, UH = 0, 32*RS
    TB = 53*RS + 16
    KB, KS = 16, 4160
    HL = KB + 4*KS
    STG = 24576
    nch = opt.get('nch', 0)
    G0 = 112
    a(f"""
    v_subrev_u32 v24, 238, v0
    v_med3_i32 v24, v24, 0, 2
    v_lshlrev_b32 v24, 6, v24          ; o
    v_lshlrev_b32 v5, 3, v0
    v_sub_u32 v25, v24, v5
    v_add_u32 v25, 2047, v25
    v_cvt_f32_u32 v32, v25
    v_lshlrev_b32 v24, 1, v24
    v_sub_u32 v24, {TB - 2*(0x4300-128)}, v24
    """)
    for i in range(1, 9): a(f'v_subrev_f32 v{32+i}, {hx(f32(float(i)))}, v32')
    for i in range(5): a(f'v_cvt_pk_bf16_f32 v{42+i}, v{32+2*i}, v{min(33+2*i, 40)}')
    for i in range(9):
        if i & 1: a(f'v_lshrrev_b32 v{G0+i}, 16, v{42+i//2}')
        else: a(f'v_and_b32 v{G0+i}, 0xffff, v{42+i//2}')
    for i in range(9): a(f'v_lshl_add_u32 v{G0+i}, v{G0+i}, 1, v24')
    TW = 122
    a(f"""
    v_and_b32 v2, 15, v0               ; n / m
    v_bfe_u32 v3, v0, 4, 3             ; G = 4*(w&1) + g
    v_lshrrev_b32 v27, 7, v0
    v_lshl_add_u32 v27, v27, 4, v2     ; j
    v_sub_u32 v25, 4, v3
    v_med3_i32 v25, v25, 0, 3
    v_lshlrev_b32 v24, v25, v27
    v_min_u32 v25, 6, v3
    v_lshlrev_b32 v25, 7, v25
    v_cmp_eq_u32 vcc, 1, v3
    v_cndmask_b32 v25, v25, 4, vcc
    v_add_lshl_u32 v{TW}, v24, v25, 1
    v_cmp_le_u32 vcc, 4, v3
    v_cndmask_b32 v25, 2, 64, vcc      ; 2*s1
    v_cmp_le_u32 vcc, 3, v3
    v_cndmask_b32 v26, 2, 64, vcc      ; s2
    v_add_u32 v{TW+1}, v25, v{TW}
    v_lshl_add_u32 v{TW+2}, v26, 1, v{TW}
    v_lshl_add_u32 v{TW+3}, v26, 1, v{TW+1}
    v_bfe_u32 v3, v0, 4, 2             ; g
    v_bfe_u32 v24, v0, 6, 1
    v_lshl_add_u32 v24, v24, 4, v2
    v_min_u32 v24, 20, v24
    v_mul_u32_u24 v126, {RS}, v24
    v_lshl_add_u32 v126, v3, 4, v126
    v_mul_u32_u24 v127, {RS}, v27
    v_lshl_add_u32 v127, v3, 4, v127
    v_lshlrev_b32 v4, 2, v1
    s_mov_b32 s12, 0xffff0000
    v_lshlrev_b32 v1, 4, v0
    v_lshrrev_b32 v96, 1, v0
    v_mul_u32_u24 v96, 18432, v96
    v_and_b32 v97, 1, v0
    v_lshl_add_u32 v96, v97, 4, v96
    s_lshl_b32 s24, s37, 5
    s_add_u32 s24, s24, {N1T}
    v_add_u32 v96, s24, v96
    v_and_b32 v103, 7, v0
    v_min_u32 v97, {NP-1}, v103
    v_bfe_u32 v98, v0, 3, 1
    v_mul_u32_u24 v98, {576*4}, v98
    v_mul_u32_u24 v97, {3456*4}, v97
    s_lshl_b32 s24, s37, 2
    v_add3_u32 v97, v97, v98, s24
    v_min_u32 v98, {NFL1-1}, v0
    v_lshlrev_b32 v98, 6, v98
    v_add_u32 v98, {FL1}, v98
    v_sub_u32 v100, 2031, v2
    v_and_b32 v101, 3, v100
    v_and_b32 v100, -4, v100
    v_mul_u32_u24 v101, {KS}, v101
    v_lshl_add_u32 v100, v100, 1, v101
    v_lshl_add_u32 v100, v3, 4, v100
    s_lshl_b32 s24, s36, 7
    s_sub_u32 s25, {KB - 64*57}, s24
    v_add_u32 v5, s25, v100
    v_lshlrev_b32 v100, 5, v2
    v_lshl_add_u32 v100, v3, 4, v100
    s_sub_u32 s25, {HL + 384}, s24
    v_add_u32 v6, s25, v100
    v_bfe_u32 v100, v0, 3, 2
    v_mul_u32_u24 v101, {KS}, v100
    v_lshrrev_b32 v100, 1, v100
    v_sub_u32 v102, v103, v100
    v_lshl_add_u32 v102, v102, 2, v101
    v_min_u32 v104, 29, v0
    v_lshlrev_b32 v104, 4, v104
    v_add_u32 v100, {KB + 2*KS - 4}, v1
    v_add_u32 v101, {KB + 3*KS - 4}, v1
    v_mov_b32 v20, 0
    v_mov_b32 v21, 0
    v_mov_b32 v22, 0
    v_mov_b32 v23, 0
    ds_write_b32 v20, v20 offset:{TB-4}
    s_waitcnt vmcnt(5)
    """)
    a.raw(';MARK0')
    nonce_issue(a, 110)
    if opt.get('wde'):
        a(f"""
        v_and_b32 v108, 63, v0
        v_min_u32 v108, 17, v108
        s_mul_i32 s24, s37, 72
        s_mul_i32 s25, s36, 18
        s_add_u32 s24, s24, s25
        v_add_lshl_u32 v108, v108, s24, 7
        global_load_dword v109, v108, {P(B_WD)}
        """)
    for r in (16, 10, 11): a(f'v_lshlrev_b32 v{r}, 16, v{r}')
    a(f'v_mul_f32 v16, {hx(LOG2E)}, v16')
    a('v_exp_f32 v16, v16')
    rnd1(a, 16)
    a(f"""
    v_mul_f32 v10, v16, v10
    v_mul_f32 v11, v16, v11
    v_mul_f32 v10, {hx(LOG2E)}, v10    ; alpha
    v_mul_f32 v11, {hx(INV2PI)}, v11   ; beta
    s_cmp_ge_u32 s36, 2
    """)
    a.branch('s_cbranch_scc1 L_ch_u')
    cnt = [0]
    def put(base, row, p, neg=''):
        t = 80 + (cnt[0] % 8); cnt[0] += 1
        a(f'v_cvt_pk_bf16_f32 v{t}, v{p}, {neg}v{p+1}')
        a(f'ds_write_b32 v4, v{t} offset:{base + row*RS}')
    A_, B_ = 32, 40
    cexps(a, [(A_+2, 8, 24), (48, 32, 27)], 10, 11)
    a(f'v_mov_b32 v{A_}, 1.0')
    a(f'v_mov_b32 v{A_+1}, 0')
    cmul(a, A_+4, A_+2, A_+2)
    cmul(a, A_+6, A_+4, A_+2)
    cur, nxt = A_, B_
    for step in range(8):
        if step < 7: cmuls(a, [(nxt+2*c, cur+2*c, 48) for c in range(4)])
        for c in range(4): put(VL, 4*step + c, cur+2*c)
        cur, nxt = nxt, cur
    a.branch('s_branch L_ch_join')
    a.label('L_ch_u')
    W1, W2, W4, E1, E2 = 24, 26, 28, 30, 32
    U = lambda r: 34 + 2*r
    ups = lambda rows: [put(UH, r, U(r), '-') for r in rows]
    cexps(a, [(W1, 1, 76), (W4, 4, 78), (E1, 256, 79), (E2, 512, 77)], 10, 11)
    a(f's_waitcnt vmcnt({3 if opt.get("wde") else 2})')
    for r in range(12, 16): a(f'v_lshlrev_b32 v{r}, 16, v{r}')
    a('v_pk_mul_f32 v[12:13], v[12:13], v[16:17] op_sel_hi:[1,0]')
    cmuls(a, [(U(0), 14, 12), (W2, W1, W1)])
    cmuls(a, [(U(1), U(0), W1), (U(2), U(0), W2), (U(4), U(0), W4), (U(8), U(0), E1), (U(12), U(0), E2)])
    ups([0])
    cmuls(a, [(U(3), U(1), W2), (U(5), U(1), W4), (U(6), U(2), W4), (U(9), U(2), E1), (U(10), U(4), E1), (U(13), U(4), E2), (U(14), U(8), E2), (U(16), U(12), E2)])
    ups([1, 2, 4, 8, 12])
    cmuls(a, [(U(7), U(3), W4), (U(11), U(6), E1), (U(15), U(10), E2), (U(17), U(14), E2), (U(18), U(16), E2)])
    ups([3, 5, 6, 9, 10, 13, 14, 16])
    cmuls(a, [(U(19), U(17), E2), (U(20), U(18), E2)])
    ups([7, 11, 15, 17, 18, 19, 20])
    a.label('L_ch_join')
    a(f's_waitcnt vmcnt({1 if opt.get("wde") else 0}) lgkmcnt(0)')
    a('s_barrier')
    FR = 24
    for s in range(8):
        r = FR + 8*s
        a(f'ds_read_b128 v[{r}:{r+3}], v127 offset:{VL + 64*s}')
        a(f'ds_read_b128 v[{r+4}:{r+7}], v126 offset:{UH + 64*s}')
    nonce_get(a, 'ch', 110)
    for s in range(8):
        a(f's_waitcnt lgkmcnt({14-2*s})')
        r = FR + 8*s; acc = 8 + 4*(s & 1)
        c = '0' if s < 2 else f'v[{acc}:{acc+3}]'
        a(f'v_mfma_f32_16x16x32_bf16 v[{acc}:{acc+3}], v[{r+4}:{r+7}], v[{r}:{r+3}], {c}')
    a(f"""
    v_pk_add_f32 v[8:9], v[8:9], v[12:13]
    v_pk_add_f32 v[10:11], v[10:11], v[14:15]
    v_cvt_pk_bf16_f32 v8, v8, v9
    v_cvt_pk_bf16_f32 v9, v10, v11
    ds_write_b16 v{TW}, v8 offset:{TB}
    ds_write_b16_d16_hi v{TW+1}, v8 offset:{TB}
    ds_write_b16 v{TW+2}, v9 offset:{TB}
    ds_write_b16_d16_hi v{TW+3}, v9 offset:{TB}
    s_waitcnt lgkmcnt(0)
    s_barrier
    global_load_dword v99, v98, {WS} sc1
    """)
    for i in range(9): a(f'ds_read_u16 v{24+i}, v{G0+i}')
    a(f"""
    ds_write_b32 v102, v20 offset:{KB+4096}
    ds_write_b128 v104, v[20:23] offset:{HL}
    s_waitcnt lgkmcnt(2)
    """)
    for i in range(4): a(f'v_lshl_or_b32 v{12+i}, v{25+2*i}, 16, v{24+2*i}')
    for i in range(4): a(f'v_lshl_or_b32 v{16+i}, v{26+2*i}, 16, v{25+2*i}')
    a(f"""
    ds_write_b128 v1, v[12:15] offset:{KB}
    ds_write_b128 v1, v[16:19] offset:{KB+KS}
    ds_write2_b32 v100, v12, v13 offset0:0 offset1:1
    ds_write2_b32 v100, v14, v15 offset0:2 offset1:3
    ds_write2_b32 v101, v16, v17 offset0:0 offset1:1
    ds_write2_b32 v101, v18, v19 offset0:2 offset1:3
    s_mov_b32 s41, {SPIN}
    """)
    a.raw(';MARK1')
    a(f"""
    v_lshlrev_b32 v21, 5, v2
    v_lshl_add_u32 v21, v3, 3, v21
    s_lshl_b32 s24, s36, 10
    s_add_u32 s24, s24, {HL+480}
    v_add_u32 v21, s24, v21
    """)
    if nch:
        rep_setup(a, 2, 104)
        a(f"""
        v_mov_b32 v4, v104
        s_sub_u32 s42, s35, 1
        s_mul_i32 s42, s42, 192
        s_add_u32 s42, s42, s3
        s_lshl_b32 s42, s42, 2
        s_add_u32 s42, s42, s36
        s_lshl_b32 s34, s36, 12
        s_add_u32 s34, s34, {STG}
        """)
        rep_decode(a)
    a.label('L_ch_poll')
    a(f"""
    s_waitcnt vmcnt(0)
    v_cmp_ne_u32 vcc, s40, v99
    s_sub_u32 s41, s41, 1
    s_cmp_eq_u32 s41, 0
    """)
    a.branch('s_cbranch_scc1 L_ch_poll_ok')
    a.branch('s_cbranch_vccz L_ch_poll_ok')
    if opt.get('mask'): a('s_mov_b64 exec, vcc')
    a(f's_sleep {opt.get("sleep", 4)}')
    a(f'global_load_dword v99, v98, {WS} sc1')
    a.branch('s_branch L_ch_poll')
    a.label('L_ch_poll_ok')
    if opt.get('mask'): a('s_mov_b64 exec, -1')
    a(f"""
    s_waitcnt lgkmcnt(0)
    s_barrier
    global_load_dword v16, v97, {WS} offset:{MODP} sc1
    global_load_dwordx4 v[8:11], v96, {WS} sc1
    v_cmp_gt_u32 vcc, {NP}, v103
    """)
    AR, ACC = 24, 88
    bregs = [120, 124, 12, 16, 8]
    for cc in range(2):
        for e in range(8):
            r = AR + 32*cc + 4*e
            off = 64*(57 - 8*e - cc)
            a(f'ds_read_b64 v[{r}:{r+1}], v5 offset:{off}')
            a(f'ds_read_b64 v[{r+2}:{r+3}], v5 offset:{off+8}')
    a(f"""
    v_lshlrev_b32 v7, 16, v7           ; Dskip
    s_waitcnt vmcnt(1)
    v_cndmask_b32 v16, 0, v16, vcc
    v_add_f32_dpp v16, v16, v16 quad_perm:[1,0,3,2] row_mask:0xf bank_mask:0xf
    v_add_f32_dpp v16, v16, v16 quad_perm:[2,3,0,1] row_mask:0xf bank_mask:0xf
    v_add_f32_dpp v16, v16, v16 row_half_mirror row_mask:0xf bank_mask:0xf
    """)
    rnd1(a, 16)
    a('v_add_f32 v17, 1.0, v16')
    rnd1(a, 17)
    a(f"""
    v_mov_b32_dpp v22, v16 row_newbcast:0 row_mask:0xf bank_mask:0xf    ; sa
    v_mov_b32_dpp v120, v17 row_newbcast:8 row_mask:0xf bank_mask:0xf   ; 1+ca
    s_waitcnt vmcnt(0)
    """)
    H = 12
    for q in range(4): unpack(a, H+2*q, H+2*q+1, 8+q, 's12')
    for q in range(4): a(f'v_pk_fma_f32 v[{H+2*q}:{H+2*q+1}], v[{H+2*q}:{H+2*q+1}], v[120:121], v[22:23] op_sel_hi:[1,0,0]')
    for q in range(4): a(f'v_cvt_pk_bf16_f32 v{8+q}, v{H+2*q}, v{H+2*q+1}')
    a(f"""
    ds_write_b128 v1, v[8:11] offset:{HL+480}
    s_waitcnt lgkmcnt(0)
    s_barrier
    """)
    a.raw(';MARK2')
    seq = [(cc, j) for cc in range(2) for j in (range(8) if cc == 0 else range(7, -1, -1))]
    def bload(k):
        cc, j = seq[k]; r = bregs[k % 5]
        a(f'ds_read_b128 v[{r}:{r+3}], v6 offset:{64 + 512*j - 64*cc}')
    PD = 4
    for k in range(PD): bload(k)
    for k, (cc, j) in enumerate(seq):
        if k + PD < 16: bload(k + PD)
        if k == 12:
            a('ds_read_b64 v[22:23], v21 offset:512')
            a('ds_read_b64 v[20:21], v21')
        a(f's_waitcnt lgkmcnt({min(PD, 15-k) + (2 if k >= 12 else 0)})')
        r = bregs[k % 5]
        for e in range(8 - j):
            d = ACC + 4*(e + j); ar = AR + 32*cc + 4*e
            c = '0' if k == 0 else f'v[{d}:{d+3}]'
            a(f'v_mfma_f32_16x16x32_bf16 v[{d}:{d+3}], v[{ar}:{ar+3}], v[{r}:{r+3}], {c}')
        if nch and k == opt.get('repk', 0):
            a(f's_cmp_ge_u32 s42, {nch}')
            a(f's_cbranch_scc1 L_ch_norep1')
            rep_issue(a, 2, 34)
            a.label('L_ch_norep1', flush=False)
    if opt.get('dbgnop'):
        for _ in range(4): a('s_nop 15')
    a(f"""
    v_and_b32 v5, 63, v0
    v_lshlrev_b32 v5, 4, v5
    s_mul_i32 s24, s36, 6144
    v_add_u32 v6, s24, v5
    s_waitcnt lgkmcnt(0)
    s_barrier
    """)
    K0 = 24
    for w in range(4):
        if w < 3:
            a(f's_cmp_lg_u32 s36, {w}')
            a.branch(f's_cbranch_scc1 L_ch_x{w}')
        for u in range(4):
            if u == w: continue
            rank = w if w < u else w - 1
            for h in range(2):
                T = 2*u + h
                a(f'ds_write_b128 v5, v[{ACC+4*T}:{ACC+4*T+3}] offset:{6144*u + 2048*rank + 1024*h}')
        if opt.get('dbgmov'):
            for q in range(8): a(f'v_mov_b32 v{K0+q}, v{ACC+8*w+q}')
        else:
            for q in range(4): a(f'v_pk_mul_f32 v[{K0+2*q}:{K0+2*q+1}], v[{ACC+8*w+2*q}:{ACC+8*w+2*q+1}], 1.0 op_sel_hi:[1,0]')
        if w < 3:
            a.branch('s_branch L_ch_xe')
            a.label(f'L_ch_x{w}')
    a.label('L_ch_xe')
    for q in range(4): unpack(a, H+2*q, H+2*q+1, 20+q, 's12')
    for q in range(4): a(f'v_pk_fma_f32 v[{K0+2*q}:{K0+2*q+1}], v[6:7], v[{H+2*q}:{H+2*q+1}], v[{K0+2*q}:{K0+2*q+1}] op_sel:[1,0,0] op_sel_hi:[1,1,1]')
    a(f"""
    v_and_b32 v8, 31, v0
    v_bfe_u32 v9, v0, 5, 1
    v_lshl_add_u32 v8, v8, 1, v9
    v_mul_u32_u24 v8, 9216, v8
    s_lshl_b32 s24, s37, 4
    s_mul_i32 s25, s36, {64*9216}
    s_add_u32 s24, s24, s25
    s_add_u32 s24, s24, {GT}
    v_add_u32 v8, s24, v8
    s_waitcnt lgkmcnt(0)
    s_barrier
    """)
    Y = 32
    for i in range(6): a(f'ds_read_b128 v[{Y+4*i}:{Y+4*i+3}], v6 offset:{1024*i}')
    for r in range(3):
        a(f's_waitcnt lgkmcnt({4-2*r})')
        for q in range(4): a(f'v_pk_add_f32 v[{K0+2*q}:{K0+2*q+1}], v[{K0+2*q}:{K0+2*q+1}], v[{Y+8*r+2*q}:{Y+8*r+2*q+1}]')
    for q in range(4): a(f'v_cvt_pk_bf16_f32 v{12+q}, v{K0+2*q}, v{K0+2*q+1}')
    a('v_permlane16_swap_b32 v12, v14')
    a('v_permlane16_swap_b32 v13, v15')
    a(f'global_store_dwordx4 v8, v[12:15], {WS}')
    a.raw(';MARK3')
    if nch:
        a(f's_cmp_ge_u32 s42, {nch}')
        a.branch('s_cbranch_scc1 L_ch_tail')
        a('s_waitcnt vmcnt(1)')
        rep_finish(a, 4, 34, 32, 56)
    a.label('L_ch_tail')
    if opt.get('wdt'):
        if opt['wdt'] < 4:
            a(f's_cmp_lg_u32 s35, {opt["wdt"]}')
            a.branch('s_cbranch_scc1 L_f_end')
            a(f"""
            v_min_u32 v1, 215, v0
            s_mul_i32 s24, s3, 216
            v_add_lshl_u32 v1, v1, s24, 7
            global_load_dword v2, v1, {P(B_WD)}
            """)
        else:
            a(f"""
            v_and_b32 v1, 63, v0
            v_min_u32 v1, 17, v1
            s_mul_i32 s24, s37, 72
            s_mul_i32 s25, s36, 18
            s_add_u32 s24, s24, s25
            v_add_lshl_u32 v1, v1, s24, 7
            global_load_dword v2, v1, {P(B_WD)}
            """)
        if opt.get('ff'): a('s_endpgm')
    a.branch('s_branch L_f_end')

def kf(opt={}):
    a = Asm()
    nch = opt.get('nch', 0)
    a(f"""
    s_load_dwordx16 s[44:59], s[0:1], 0
    s_load_dwordx16 s[60:75], s[0:1], 64
    s_load_dwordx4 s[76:79], s[0:1], 128
    s_and_b32 s3, s2, 255              ; cu
    s_lshr_b32 s35, s2, 8              ; slot
    s_sub_u32 s6, s2, 184
    s_cmp_ge_u32 s6, 8
    s_cbranch_scc1 L_f_nopf
    s_getpc_b64 s[6:7]
    """)
    a.raw('L_f_pc:')
    a(f"""
    v_lshlrev_b32 v1, 7, v0
    s_mov_b32 s8, L_code_end-L_f_pc-4
    v_min_u32 v2, s8, v1
    global_load_dword v4, v2, s[6:7]
    v_add_u32 v1, 32768, v1
    v_min_u32 v2, s8, v1
    global_load_dword v5, v2, s[6:7]
    s_waitcnt vmcnt(0) lgkmcnt(0)
    s_endpgm
    """)
    a.label('L_f_nopf')
    a(f"""
    v_lshrrev_b32 v1, 6, v0
    s_cmp_ge_u32 s3, 192
    v_readfirstlane_b32 s36, v1
    s_cbranch_scc1 L_f_bulk
    s_cmp_eq_u32 s35, 0
    s_cbranch_scc1 L_f_s0
    s_cmp_ge_u32 s35, 4
    s_cbranch_scc1 L_f_end
    """)
    chan_pro(a)
    a.branch('s_branch L_f_chan')
    a.label('L_f_s0')
    a("""
    s_setprio 3
    s_cmp_ge_u32 s3, 128
    s_cbranch_scc1 L_f_aux
    """)
    ln_pro(a, opt)
    a.branch('s_branch L_f_ln')
    a.label('L_f_aux')
    a(f"""
    s_cmp_ge_u32 s3, {NFL1}
    s_cbranch_scc1 L_f_misc
    s_sub_u32 s11, s3, 128             ; 0..53: p = t/9, cg = t%9
    s_mul_i32 s10, s11, 7282
    s_lshr_b32 s10, s10, 16
    s_mul_i32 s12, s10, 9
    s_sub_u32 s11, s11, s12
    """)
    a.label('L_f_gv')
    gemv_pro(a)
    a.branch('s_branch L_f_gvb')
    a.label('L_f_misc')
    a(f"""
    s_cmp_eq_u32 s3, 183
    s_cbranch_scc1 L_f_zero
    s_memrealtime s[12:13]
    v_mov_b32 v4, 0
    s_cmp_lg_u32 s36, 0
    s_waitcnt lgkmcnt(0)
    s_cbranch_scc1 L_f_end
    s_or_b32 s12, s12, 0x80000000
    v_mov_b32 v5, s12
    s_mov_b64 exec, 1
    global_store_dword v4, v5, {DBG} sc1
    s_branch L_f_end
    """)
    a.label('L_f_ln'); ln_body(a)
    a.label('L_f_gvb'); gemv_body(a)
    a('s_cmp_ge_u32 s3, 192')
    a.branch('s_cbranch_scc1 L_f_fin')
    a('s_waitcnt vmcnt(0)')
    nonce_get(a, 'gv', 32)
    publish_exit(a, 30)
    a.label('L_f_fin')
    a(f"""
    s_cmp_ge_u32 s36, 2
    s_cbranch_scc1 L_f_end
    s_lshl_b32 s12, s11, 1
    s_add_u32 s12, s12, s36
    s_lshl_b32 s12, s12, 2
    s_add_u32 s12, s12, {112 - 72}
    v_mov_b32 v9, s12
    v_mov_b32 v10, 1
    v_add_u32 v7, s14, v7              ; column*4
    s_waitcnt vmcnt(0)
    s_mov_b64 exec, 1
    global_atomic_add v11, v9, v10, {DBG} sc0
    s_waitcnt vmcnt(0)
    v_readfirstlane_b32 s12, v11
    s_mov_b64 exec, -1
    s_cmp_lg_u32 s12, {NP-1}
    s_cbranch_scc1 L_f_end
    v_mov_b32 v9, v7
    """)
    for p in range(NP):
        a(f'global_load_dword v{12+p}, v9, {WS} offset:{MODP} sc1')
        if p < NP-1: a(f'v_add_u32 v9, {3456*4}, v9')
    a(f"""
    v_subrev_u32 v9, {2304*4}, v7
    v_cmp_gt_u32 vcc, {576*4}, v9
    v_cndmask_b32 v10, 0, 1.0, vcc
    v_add_u32 v7, {MODF - 1152*4}, v7
    s_waitcnt vmcnt(0)
    v_add_f32 v12, v12, v13
    v_add_f32 v14, v14, v15
    v_add_f32 v16, v16, v17
    v_add_f32 v12, v12, v14
    v_add_f32 v12, v12, v16
    """)
    rnd1(a, 12)
    a('v_add_f32 v12, v10, v12')
    rnd1(a, 12)
    a(f'global_store_dword v7, v12, {WS} sc1')
    a.branch('s_branch L_f_end')
    a.label('L_f_chan'); chan_body(a, opt)
    a.label('L_f_zero')
    a(f"""
    v_lshlrev_b32 v1, 4, v0
    v_add_u32 v1, {GFL}, v1
    v_mov_b32 v4, 0
    v_mov_b32 v5, 0
    v_mov_b32 v6, 0
    v_mov_b32 v7, 0
    s_waitcnt lgkmcnt(0)
    """)
    for i in range(12):
        a(f'global_store_dwordx4 v1, v[4:7], {WS} sc1')
        if i < 11: a('v_add_u32 v1, 4096, v1')
    a.branch('s_branch L_f_end')
    a.label('L_f_bulk')
    a(f"""
    s_cmp_ge_u32 s35, 4
    s_cbranch_scc1 L_f_end
    s_lshl_b32 s39, s35, 6
    s_add_u32 s39, s39, s3
    s_sub_u32 s39, s39, 192
    """)
    if opt.get('bdelay'):
        a('s_waitcnt lgkmcnt(0)')
        for rep in range(opt['bdelay']):
            nonce_issue(a, 8)
            a('s_waitcnt vmcnt(0)')
        nonce_get(a, 'bk', 8)
    a(f"""
    s_mov_b32 s11, s39                 ; 0..107: p = t/18, cg = 9 + t%18
    s_sub_u32 s39, s39, 108
    s_cmp_ge_u32 s11, 108
    s_cbranch_scc1 L_f_rep
    s_mul_i32 s10, s11, 3641
    s_lshr_b32 s10, s10, 16
    s_mul_i32 s12, s10, 18
    s_sub_u32 s11, s11, s12
    s_add_u32 s11, s11, 9
    s_branch L_f_gv
    """)
    a.label('L_f_rep')
    rep_setup(a, 2, 4)
    a(f"""
    s_lshl_b32 s42, s39, 2
    s_add_u32 s42, s42, s36
    s_add_u32 s42, s42, {nch}
    s_lshl_b32 s34, s36, 13
    s_add_u32 s38, s34, 4096
    s_waitcnt lgkmcnt(0)
    """)
    if opt.get('wdb'):
        a(f"""
        s_mul_i32 s24, s39, 281
        v_add_u32 v8, s24, v0
        v_min_u32 v9, {41472-1}, v8
        v_lshlrev_b32 v9, 7, v9
        global_load_dword v10, v9, {P(B_WD)}
        v_min_u32 v9, 24, v0
        v_add3_u32 v8, v9, s24, 64
        v_add_u32 v8, 192, v8
        v_min_u32 v9, {41472-1}, v8
        v_lshlrev_b32 v9, 7, v9
        global_load_dword v11, v9, {P(B_WD)}
        """)
    a.label('L_f_rloop')
    a(f's_cmp_ge_u32 s42, {NTASK}')
    a.branch('s_cbranch_scc1 L_f_end')
    rep_decode(a)
    rep_issue(a, 2, 34)
    a('s_mov_b32 s37, s33')
    a('s_add_u32 s42, s42, 592')
    a(f's_cmp_ge_u32 s42, {NTASK}')
    a.branch('s_cbranch_scc1 L_f_rone')
    rep_decode(a)
    rep_issue(a, 2, 38)
    a('s_add_u32 s42, s42, 592')
    a('s_waitcnt vmcnt(4)')
    rep_finish(a, 4, 34, 16, 8, 37)
    a('s_waitcnt vmcnt(4)')
    rep_finish(a, 4, 38, 32, 48)
    a.branch('s_branch L_f_rloop')
    a.label('L_f_rone')
    a('s_waitcnt vmcnt(0)')
    rep_finish(a, 4, 34, 16, 8)
    a.label('L_f_end')
    return ('front_kernel', a.text(), dict(vgpr=128, sgpr=80, accum=128), 1024, 256, 40960)
```

```python
from asmlib import Asm
from gen import *

class VQ:
    def __init__(self, a): self.a, self.q = a, []
    def issue(self, tag, text):
        self.a(text); self.q.append(tag)
    def count_after(self, tag):
        i = len(self.q) - 1 - self.q[::-1].index(tag)
        return len(self.q) - 1 - i
    def wait(self, tags, extra=''):
        n = min(self.count_after(t) for t in tags)
        n = min(n, 63)
        self.a(f's_waitcnt vmcnt({n}){extra}')

def areg(idx):
    if idx < 64: return f'a[{4*idx}:{4*idx+3}]'
    b = AV + 4*(idx-64)
    return f'v[{b}:{b+3}]'
AV = 16

def k4(opt={}):
    exact = opt.get('exact_epi', True)
    stmod = opt.get('st', '')
    PD = opt.get('PD', 5)
    a = Asm(); vq = VQ(a)
    ACC = 48
    BF, NBF = 176, 10
    PK = 216
    T = 232
    a(f"""
    s_cmp_ge_u32 s2, 256
    s_cbranch_scc1 L_k4_end
    s_load_dwordx2 s[4:5], s[0:1], {D_WS}
    v_lshrrev_b32 v1, 6, v0
    v_and_b32 v13, 63, v0
    v_readfirstlane_b32 s6, v1         ; wave
    s_and_b32 s7, s2, 1
    s_lshl_b32 s7, s7, 2
    s_bfe_u32 s3, s2, 0x20003
    s_add_u32 s7, s7, s3               ; rb
    s_bfe_u32 s3, s2, 0x20001
    s_lshl_b32 s3, s3, 3
    s_lshr_b32 s20, s2, 5
    s_add_u32 s3, s3, s20              ; cb
    s_lshl_b32 s20, s7, 4
    s_lshl_b32 s21, s6, 2
    s_add_u32 s20, s20, s21
    v_lshlrev_b32 v1, 4, v13
    v_add_u32 v2, 18432, v1
    v_add_u32 v3, {2*18432}, v1
    v_add_u32 v4, {3*18432}, v1
    s_lshl_b32 s22, s6, 10             ; wave*1024
    v_add_u32 v5, s22, v1
    s_mul_i32 s23, s20, 18432
    s_add_u32 s23, s23, {H2F}
    s_mul_i32 s24, s3, {9*36864}
    s_add_u32 s24, s24, {WGU}
    s_and_b32 s25, s3, 1               ; parity
    s_mul_i32 s26, s25, 36864
    s_xor_b32 s27, s25, 1
    s_mul_i32 s27, s27, {8*36864}
    s_mov_b32 s29, 4096
    s_mov_b32 s30, 8192
    s_mov_b32 s31, 12288
    s_mov_b32 s32, 16384
    s_waitcnt lgkmcnt(0)
    s_add_u32 s8, s4, s23
    s_addc_u32 s9, s5, 0
    s_mov_b32 s10, {4*18432}
    s_mov_b32 s11, 0x20000
    s_add_u32 s12, s4, s24
    s_addc_u32 s13, s5, 0
    s_mov_b32 s14, {9*36864}
    s_mov_b32 s15, 0x20000
    """)
    RING = 12
    def quad_src(tile, q):
        return ('s27', q*4096) if tile == 8 else ('s26', tile*36864 + q*4096)
    groups = [[(t, i) for t in range(3)] for i in range(9)]
    for t in range(3, 9):
        for c in range(3): groups.append([(t, 3*c + e) for e in range(3)])
    qpos = {}
    for gi, g in enumerate(groups):
        for e, tq in enumerate(g): qpos[tq] = (gi, (gi % RING)*12288 + e*4096)
    def dma(tq):
        sreg, off = quad_src(*tq)
        return [f's_add_u32 m0, s22, {qpos[tq][1]}', f's_add_u32 s28, {sreg}, {off}',
                ('V', ('Q', tq), 'buffer_load_dwordx4 v5, s[12:15], s28 offen lds')]
    def aload(s, rt):
        so = '0' if s < 4 else f's{28 + s//4}'
        return [('V', ('A', s, rt), f'buffer_load_dwordx4 {areg(4*s+rt)}, v{1+rt}, s[8:11], {so} offen offset:{1024*(s%4)}')]
    def emit(item):
        for x in item:
            if isinstance(x, tuple): vq.issue(x[1], x[2])
            else: a(x)
    def group_items(gi):
        it = [dma(tq) for tq in groups[gi]]
        if gi < 9:
            for s in (2*gi, 2*gi+1):
                for rt in range(4): it.append(aload(s, rt))
        return it
    AHEAD = opt.get('AHEAD', 5)
    A0 = opt.get('A0', AHEAD)
    for gi in range(A0):
        for it in group_items(gi): emit(it)
    a(f"""
    v_mov_b32 v6, v1
    v_add_u32 v7, 49152, v1
    v_add_u32 v8, 98304, v1
    s_mul_i32 s23, s20, {144*1024}
    s_mul_i32 s24, s3, 9
    s_add_u32 s24, s24, s25
    s_lshr_b32 s24, s24, 1             ; s2_0
    s_lshl_b32 s24, s24, 10
    s_add_u32 s23, s23, {HF}
    s_add_u32 s16, s4, s23
    s_addc_u32 s17, s5, 0
    s_mov_b32 s18, {4*144*1024}
    s_mov_b32 s19, 0x20000
    v_add_u32 v9, s24, v1
    v_add_u32 v10, {144*1024}, v9
    v_add_u32 v11, {2*144*1024}, v9
    v_add_u32 v12, {3*144*1024}, v9
    s_cmp_eq_u32 s25, 0
    s_cselect_b32 s33, s29, {hx(-1016)}
    s_mov_b32 s34, 0xffff0000
    """)
    frags = []
    for s in range(18):
        for t in range(3):
            for m in range(2): frags.append((t, s, m))
    for t in range(3, 9):
        for s in range(18):
            for m in range(2): frags.append((t, s, m))
    def faddr(f):
        t, s, m = f
        gi, off = qpos[(t, s//2)]
        return gi, off + (2*(s % 2) + m)*1024
    accset = {0: 0, 1: 1, 2: 2, 3: 3, 4: 0, 5: 1, 6: 2, 7: 3, 8: 0}
    pub = {gi: gi for gi in range(9)}
    for gi in range(9, 27, 3): pub[gi] = gi + 2
    memq, valq = [], []
    issued_groups = A0
    def epilogue(tile):
        base = ACC + 32*accset[tile]
        half = tile & 1
        out = []
        for rt in range(4):
            g, u, p = base + 4*rt, base + 16 + 4*rt, PK + 4*rt + 2*half
            t = T + 8*(rt & 1)
            if exact:
                out += [f'v_cvt_pk_bf16_f32 v{t}, v{g}, v{g+1}', f'v_cvt_pk_bf16_f32 v{t+1}, v{g+2}, v{g+3}',
                        f'v_cvt_pk_bf16_f32 v{t+2}, v{u}, v{u+1}', f'v_cvt_pk_bf16_f32 v{t+3}, v{u+2}, v{u+3}',
                        f'v_pk_max_i16 v{t}, v{t}, 0', f'v_pk_max_i16 v{t+1}, v{t+1}, 0']
                for h in range(2):
                    out += [f'v_lshlrev_b32 v{t+4}, 16, v{t+h}', f'v_lshlrev_b32 v{t+5}, 16, v{t+2+h}',
                            f'v_and_b32 v{t+6}, s34, v{t+h}', f'v_and_b32 v{t+7}, s34, v{t+2+h}',
                            f'v_mul_f32 v{t+4}, v{t+4}, v{t+5}', f'v_mul_f32 v{t+6}, v{t+6}, v{t+7}',
                            f'v_cvt_pk_bf16_f32 v{p+h}, v{t+4}, v{t+6}']
            else:
                for q in range(4): out += [f'v_max_f32 v{t+q}, 0, v{g+q}']
                for q in range(4): out += [f'v_mul_f32 v{t+q}, v{t+q}, v{u+q}']
                for h in range(2): out += [f'v_cvt_pk_bf16_f32 v{p+h}, v{t+2*h}, v{t+2*h+1}']
            if tile == 8:
                out += [f'v_add_u32 v{9+rt}, s33, v{9+rt}',
                        ('V', ('S', tile, rt), f'buffer_store_dwordx2 v[{p}:{p+1}], v{9+rt}, s[16:19], 0 offen {stmod}')]
            elif half:
                out += [('V', ('S', tile, rt), f'buffer_store_dwordx4 v[{p-2}:{p+1}], v{9+rt}, s[16:19], 0 offen offset:{1024*(tile//2)} {stmod}')]
        if opt.get('nostore'): out = [x for x in out if not isinstance(x, tuple)]
        return out
    published = -1
    def read(k):
        nonlocal published, issued_groups
        gi, off = faddr(frags[k])
        if gi > published:
            assert gi in pub
            while memq and any(('Q', tq) not in vq.q for g2 in range(gi, pub[gi]+1) for tq in groups[g2]):
                emit(memq.pop(0))
            vq.wait([('Q', tq) for g2 in range(gi, pub[gi]+1) for tq in groups[g2]])
            a('s_barrier')
            published = pub[gi]
            lim = gi + AHEAD
            if lim > 8: lim = max(lim, gi + 4)
            if gi >= 9: lim = gi + opt.get('AH2', 8)
            lim = min(26, gi + RING - 2, lim)
            while issued_groups <= lim:
                memq.extend(group_items(issued_groups)); issued_groups += 1
        r = BF + 4*(k % NBF)
        a(f'ds_read_b128 v[{r}:{r+3}], v{6 + off//49152} offset:{off % 49152}')
    for k in range(PD): read(k)
    a.raw(';MARK0')
    waitedA = set()
    for k, (t, s, m) in enumerate(frags):
        if (t, s, m) == (3, 0, 0): a.raw(';MARK1')
        if (t, s, m) == (6, 0, 0): a.raw(';MARK2')
        if s == 0 and m == 0 and t >= 3:
            for t2 in ((0, 1, 2) if t == 3 else (t-1,)): valq += [(t2, x) for x in epilogue(t2)]
            while valq and valq[0][0] <= t - 4: emit([valq.pop(0)[1]])
        if s not in waitedA:
            while ('A', s, 3) not in vq.q: emit(memq.pop(0))
            vq.wait([('A', s, rt) for rt in range(4)]); waitedA.add(s)
        if k + PD < len(frags): read(k + PD)
        a(f's_waitcnt lgkmcnt({min(PD, len(frags)-1-k)})')
        r = BF + 4*(k % NBF)
        for rt in range(4):
            d = ACC + 32*accset[t] + 16*m + 4*rt
            c = '0' if s == 0 else f'v[{d}:{d+3}]'
            a(f'v_mfma_f32_16x16x32_bf16 v[{d}:{d+3}], v[{r}:{r+3}], {areg(4*s+rt)}, {c}')
            if rt in opt.get('memslots', (1,)) and memq: emit(memq.pop(0))
            else:
                vn = opt.get('vn', ((2, 1, 2, 1),))
                n = vn[k % len(vn)][rt]
                for _ in range(n):
                    if valq and not (s == 0 and valq[0][0] >= t - 1): emit([valq.pop(0)[1]])
    assert not memq
    a.raw(';MARK3')
    print('gemm1 leftover valu', len(valq), 'nops', a.nops)
    for _, x in valq: emit([x])
    for x in epilogue(8): emit([x])
    a.label('L_k4_end')
    nm = opt.get('name', 'gemm1')
    return (nm + '_kernel', a.text().replace('L_k4', 'L_' + nm), dict(vgpr=256, sgpr=40, accum=256, agpr=256), 256, 256, RING*12288)

def k5(opt={}):
    PD = opt.get('PD', 5)
    a = Asm(); vq = VQ(a)
    ACC = 48
    BF, NBF = 192, 10
    a(f"""
    s_cmp_ge_u32 s2, 256
    s_cbranch_scc1 L_k5_end
    s_load_dwordx2 s[4:5], s[0:1], {D_WS}
    v_lshrrev_b32 v1, 6, v0
    v_and_b32 v13, 63, v0
    v_readfirstlane_b32 s6, v1         ; wave
    s_bfe_u32 s21, s2, 0x20001         ; q
    s_and_b32 s7, s2, 1
    s_lshl_b32 s7, s7, 3
    s_bfe_u32 s3, s2, 0x30003
    s_add_u32 s7, s7, s3
    s_lshr_b32 s3, s2, 6               ; cb
    s_and_b32 s35, s6, 1               ; wm
    s_lshr_b32 s36, s6, 1              ; wk
    s_lshl_b32 s20, s7, 3
    s_lshl_b32 s23, s35, 2
    s_add_u32 s20, s20, s23
    v_lshlrev_b32 v14, 4, v13
    s_lshl_b32 s23, s36, 1
    s_mul_i32 s24, s23, {144*1024}
    s_xor_b32 s23, s23, 2
    s_mul_i32 s25, s23, {144*1024}
    v_add_u32 v1, s24, v14
    v_add_u32 v2, {144*1024}, v1
    v_add_u32 v3, s25, v14
    v_add_u32 v4, {144*1024}, v3
    s_lshl_b32 s22, s6, 10             ; wave*1024
    v_add_u32 v5, s22, v14
    s_mul_i32 s23, s20, 144
    s_mul_i32 s24, s21, 36
    s_add_u32 s23, s23, s24
    s_add_u32 s23, s23, s36
    s_lshl_b32 s23, s23, 10
    s_add_u32 s23, s23, {HF}
    s_mul_i32 s25, s3, 144
    s_add_u32 s24, s24, s25
    s_mul_i32 s24, s24, 9216
    s_add_u32 s24, s24, {WD}
    s_waitcnt lgkmcnt(0)
    s_add_u32 s8, s4, s23
    s_addc_u32 s9, s5, 0
    s_mov_b32 s10, {4*144*1024}
    s_mov_b32 s11, 0x20000
    s_add_u32 s12, s4, s24
    s_addc_u32 s13, s5, 0
    s_mov_b32 s14, {36*9216}
    s_mov_b32 s15, 0x20000
    """)
    RQ = 36
    def dma(q):
        return [f's_add_u32 m0, s22, {(q % RQ)*4096}', f's_mov_b32 s28, {q*4096}',
                ('V', ('Q', q), 'buffer_load_dwordx4 v5, s[12:15], s28 offen lds')]
    def aload(r, rt):
        pre = [f's_mov_b32 s29, {(r//2)*4096}'] if (rt == 0) else []
        return pre + [('V', ('A', r, rt), f'buffer_load_dwordx4 {areg(4*r+rt)}, v{1+rt}, s[8:11], s29 offen offset:{2048*(r%2)}')]
    def emit(item):
        for x in item:
            if isinstance(x, tuple): vq.issue(x[1], x[2])
            else: a(x)
    lastq = lambda r: (18*r + 17)//4
    def round_items(r):
        q0 = lastq(r-1) + 1 if r else 0
        return [dma(q) for q in range(q0, lastq(r)+1)] + [aload(r, rt) for rt in range(4)]
    AHEAD = opt.get('AHEAD', 6)
    A0 = opt.get('A0', AHEAD)
    for r in range(A0):
        for it in round_items(r): emit(it)
    a(f"""
    s_mul_i32 s23, s36, 9216
    v_add_u32 v6, s23, v14
    v_add_u32 v7, {3*18432}, v6
    v_add_u32 v8, {6*18432}, v6
    """)
    frags = [(r, tt) for r in range(18) for tt in range(9)]
    memq = []
    issued = A0
    published = -1
    def read(k):
        nonlocal published, issued
        r, tt = frags[k]
        if r > published:
            while memq and ('Q', lastq(r)) not in vq.q: emit(memq.pop(0))
            vq.wait([('Q', lastq(r))])
            a('s_barrier')
            published = r
            while issued < 18 and issued <= r + AHEAD and lastq(issued) < (18*(r-1))//4 + RQ:
                memq.extend(round_items(issued)); issued += 1
        off = (r % 8)*18432 + tt*1024
        rg = BF + 4*(k % NBF)
        a(f'ds_read_b128 v[{rg}:{rg+3}], v{6 + off//(3*18432)} offset:{off % (3*18432)}')
    for k in range(PD): read(k)
    a.raw(';MARK0')
    for k, (r, tt) in enumerate(frags):
        if (r, tt) == (9, 0): a.raw(';MARK1')
        if tt == 0:
            while ('A', r, 3) not in vq.q: emit(memq.pop(0))
            vq.wait([('A', r, rt) for rt in range(4)])
        if k + PD < len(frags): read(k + PD)
        a(f's_waitcnt lgkmcnt({min(PD, len(frags)-1-k)})')
        rg = BF + 4*(k % NBF)
        for rt in range(4):
            d = ACC + 36*rt + 4*tt
            c = '0' if r == 0 else f'v[{d}:{d+3}]'
            if not opt.get('nomfma'): a(f'v_mfma_f32_16x16x32_bf16 v[{d}:{d+3}], v[{rg}:{rg+3}], {areg(4*r+rt)}, {c}')
            if rt in opt.get('memslots', (1,)) and memq: emit(memq.pop(0))
    assert not memq and issued == 18
    a.raw(';MARK2')
    a(f"""
    s_barrier
    s_mul_i32 s23, s6, 18432
    v_add_u32 v6, s23, v14
    s_xor_b32 s23, s6, 2
    s_mul_i32 s23, s23, 18432
    v_add_u32 v7, s23, v14
    """)
    for i in range(18):
        d = ACC + 72 + 4*i
        a(f'ds_write_b128 v6, v[{d}:{d+3}] offset:{1024*i}')
    a(f"""
    s_lshl_b32 s23, s36, 1
    s_add_u32 s23, s23, s20
    s_lshl_b32 s23, s23, 2
    s_add_u32 s23, s23, s3
    s_mul_i32 s23, s23, 9216
    s_mul_i32 s24, s21, 4718592
    s_add_u32 s23, s23, s24
    s_add_u32 s23, s23, {PART}
    s_add_u32 s16, s4, s23
    s_addc_u32 s17, s5, 0
    s_mov_b32 s18, {2*36864}
    s_mov_b32 s19, 0x20000
    s_waitcnt lgkmcnt(0)
    s_barrier
    """)
    a.raw(';MARK3')
    for i in range(18):
        d = ACC + 72 + 4*i
        a(f'ds_read_b128 v[{d}:{d+3}], v7 offset:{1024*i}')
    for i in range(18):
        a(f's_waitcnt lgkmcnt({min(15, 17-i)})')
        d = ACC + 4*i
        a(f'v_pk_add_f32 v[{d}:{d+1}], v[{d}:{d+1}], v[{d+72}:{d+73}]')
        a(f'v_pk_add_f32 v[{d+2}:{d+3}], v[{d+2}:{d+3}], v[{d+74}:{d+75}]')
        off = (i//9)*36864 + (i % 9)*1024
        a(f's_mov_b32 s28, {off}')
        if not opt.get('nostore'): a(f'buffer_store_dwordx4 v[{d}:{d+3}], v14, s[16:19], s28 offen {opt.get("st", "")}')
    a.label('L_k5_end')
    nm = opt.get('name', 'gemm2')
    return (nm + '_kernel', a.text().replace('L_k5', 'L_' + nm), dict(vgpr=256, sgpr=40, accum=256, agpr=256), 256, 256, 147456)

def k6():
    a = Asm()
    a(f"""
    s_cmp_ge_u32 s2, 1152
    s_cbranch_scc1 L_k6_end
    s_load_dwordx2 s[4:5], s[0:1], {D_WS}
    s_load_dwordx2 s[6:7], s[0:1], {D_OUT}
    v_lshrrev_b32 v1, 6, v0
    s_lshl_b32 s3, s2, 2
    v_add_u32 v1, s3, v1
    v_mul_u32_u24 v2, 1821, v1
    v_lshrrev_b32 v2, 16, v2
    v_mul_u32_u24 v3, 36, v2
    v_cmp_lt_u32 vcc, v1, v3
    v_subb_co_u32 v2, vcc, v2, 0, vcc
    v_mul_u32_u24 v3, 36, v2
    v_sub_u32 v3, v1, v3               ; dtile
    s_lshl_b32 s3, s2, 12
    s_add_u32 s3, s3, {PART}
    v_lshlrev_b32 v4, 4, v0
    v_add_u32 v4, s3, v4
    v_add_u32 v5, 4718592, v4
    v_add_u32 v6, {2*4718592}, v4
    v_add_u32 v7, {3*4718592}, v4
    v_and_b32 v8, 15, v0
    v_lshl_add_u32 v8, v2, 4, v8       ; row
    v_bfe_u32 v9, v0, 4, 2
    v_lshlrev_b32 v9, 2, v9
    v_lshl_add_u32 v9, v3, 4, v9       ; d
    v_mul_u32_u24 v8, 1152, v8
    v_lshl_add_u32 v8, v9, 1, v8
    v_add_u32 v10, {X1}, v8
    v_lshlrev_b32 v9, 2, v9
    v_add_u32 v9, {MODP+5*2304}, v9
    v_add_u32 v11, {3456*4}, v9
    v_add_u32 v30, {2*3456*4}, v9
    v_add_u32 v31, {3*3456*4}, v9
    s_waitcnt lgkmcnt(0)
    global_load_dwordx4 v[12:15], v4, s[4:5]
    global_load_dwordx4 v[16:19], v5, s[4:5]
    global_load_dwordx4 v[20:23], v6, s[4:5]
    global_load_dwordx4 v[24:27], v7, s[4:5]
    global_load_dwordx2 v[28:29], v10, s[4:5]
    global_load_dwordx4 v[32:35], v9, s[4:5]
    global_load_dwordx4 v[36:39], v11, s[4:5]
    global_load_dwordx4 v[40:43], v30, s[4:5]
    global_load_dwordx4 v[44:47], v31, s[4:5]
    s_mov_b32 s12, 0xffff0000
    s_waitcnt vmcnt(5)
    """)
    for q in range(4):
        a(f'v_add_f32 v{12+q}, v{12+q}, v{16+q}')
        a(f'v_add_f32 v{20+q}, v{20+q}, v{24+q}')
    for q in range(4): a(f'v_add_f32 v{12+q}, v{12+q}, v{20+q}')
    a('s_waitcnt vmcnt(0)')
    for q in range(4):
        a(f'v_add_f32 v{32+q}, v{32+q}, v{36+q}')
        a(f'v_add_f32 v{40+q}, v{40+q}, v{44+q}')
    for q in range(4): a(f'v_add_f32 v{32+q}, v{32+q}, v{40+q}')
    for q in range(4): rnd1(a, 32+q)
    for h in range(2):
        x0, x1 = 12+2*h, 13+2*h
        a(f'v_cvt_pk_bf16_f32 v16, v{x0}, v{x1}')
        unpack(a, x0, x1, 16, 's12')
        a(f'v_mul_f32 v{x0}, v{x0}, v{32+2*h}')
        a(f'v_mul_f32 v{x1}, v{x1}, v{33+2*h}')
        a(f'v_cvt_pk_bf16_f32 v16, v{x0}, v{x1}')
        unpack(a, x0, x1, 16, 's12')
        unpack(a, 17, 18, 28+h, 's12')
        a(f'v_add_f32 v{x0}, v{x0}, v17')
        a(f'v_add_f32 v{x1}, v{x1}, v18')
        a(f'v_cvt_pk_bf16_f32 v{30+h}, v{x0}, v{x1}')
    a('global_store_dwordx2 v8, v[30:31], s[6:7]')
    a.label('L_k6_end')
    return ('final_kernel', a.text(), dict(vgpr=48, sgpr=32, accum=48), 1152, 256, 0)

HEADER = open('adaLN_cond__ssm_conv_s4__glu_gated_reglu__prompt.s.ref').read().split('; Override')[0] if __name__ == '__main__' else ''
if __name__ == '__main__':
    build([k1(), k2(), k3(), k4(), k5(), k6()], 'v1.s', HEADER)
```

```python
import sys
from asmlib import Asm, kernel_text

L, D, NM, F = 2048, 576, 128, 4608
A_U, A_ARE, A_AIM, A_BRE, A_BIM, A_CRE, A_CIM, A_LDT, A_DSK, B_X, B_WG, B_WU, B_WD, C_C, W_MOD, D_OUT, D_DBG, D_WS = [8*i for i in range(18)]
MODP = 0x0
MODF = 0x10000
N1T  = 0x20000
KT   = 0x260000
GT   = 0x500000
X1   = 0x740000
H2F  = 0x980000
WGU  = 0xC00000
WD   = 0x1620000
HF   = 0x1C00000
PART = 0x2E00000
WS_END = 0x4000000

OPT = dict(nt='nt', wt='sc1', n1st='', x1st='sc1', wdst='')
LOG2E = 0x3fb8aa3b
INV2PI = 0x3e22f983
def f32(x):
    import struct
    return struct.unpack('<I', struct.pack('<f', x))[0]
def hx(x): return hex(x & 0xffffffff)

def unpack(a, lo, hi, p, mask='0xffff0000'):
    a(f'v_lshlrev_b32 v{lo}, 16, v{p}')
    a(f'v_and_b32 v{hi}, {mask}, v{p}')
def rnd1(a, r, t=None):
    a(f'v_cvt_pk_bf16_f32 v{r}, v{r}, v{r}')
    a(f'v_and_b32 v{r}, 0xffff0000, v{r}')

NG_GEMV, NG_LN1, NG_KGEN, NG_REP = 108, 128, 576, 486

def role_gemv(a):
    a(f"""
    s_load_dwordx2 s[6:7], s[0:1], {C_C}
    s_load_dwordx2 s[8:9], s[0:1], {W_MOD}
    s_mul_i32 s10, s3, 2428
    s_lshr_b32 s10, s10, 16            ; p = wg/27
    s_mul_i32 s11, s10, 27
    s_sub_u32 s11, s3, s11             ; cg
    s_mul_i32 s12, s10, 144
    v_lshrrev_b32 v1, 4, v0
    v_and_b32 v2, 15, v0               ; c16
    v_add_u32 v3, s12, v1
    v_lshlrev_b32 v4, 1, v3            ; c offset
    s_movk_i32 s13, 6912
    v_mul_lo_u32 v5, v3, s13
    s_lshl_b32 s14, s11, 8
    v_lshl_add_u32 v5, v2, 4, v5
    v_add_u32 v5, s14, v5
    s_waitcnt lgkmcnt(0)
    """)
    W0, C0, ACC = 8, 44, 54
    for i in range(9):
        a(f'global_load_ushort v{C0+i}, v4, s[6:7] offset:{32*i}')
    for i in range(9):
        a(f'global_load_dwordx4 v[{W0+4*i}:{W0+4*i+3}], v5, s[8:9] {OPT["nt"]}')
        if i < 8: a(f'v_add_u32 v5, {16*6912}, v5')
    for j in range(8): a(f'v_mov_b32 v{ACC+j}, 0')
    a('s_waitcnt vmcnt(9)')
    for i in range(9): a(f'v_lshlrev_b32 v{C0+i}, 16, v{C0+i}')
    T = 62
    for i in range(9):
        a(f'v_mul_f32 v{T}, {hx(LOG2E|0x80000000)}, v{C0+i}')
        a(f'v_exp_f32 v{T}, v{T}')
        a(f'v_add_f32 v{T}, 1.0, v{T}')
        a(f'v_rcp_f32 v{T}, v{T}')
        a(f'v_mul_f32 v{C0+i}, v{C0+i}, v{T}')
        rnd1(a, C0+i)
    for i in range(9):
        a(f's_waitcnt vmcnt({8-i})')
        for q in range(4):
            unpack(a, T, T+1, W0+4*i+q)
            a(f'v_fmac_f32 v{ACC+2*q}, v{C0+i}, v{T}')
            a(f'v_fmac_f32 v{ACC+2*q+1}, v{C0+i}, v{T+1}')
    a(f"""
    v_lshlrev_b32 v6, 9, v1
    v_lshl_add_u32 v6, v2, 5, v6
    ds_write_b128 v6, v[{ACC}:{ACC+3}]
    ds_write_b128 v6, v[{ACC+4}:{ACC+7}] offset:16
    s_waitcnt lgkmcnt(0)
    s_barrier
    v_readfirstlane_b32 s15, v0
    s_cmp_ge_u32 s15, 128
    """)
    a.branch('s_cbranch_scc1 L_k1_end')
    a('v_lshlrev_b32 v6, 2, v0')
    for j in range(16): a(f'ds_read_b32 v{8+j}, v6 offset:{512*j}')
    a(f"""
    s_mul_i32 s12, s10, {3456*4}
    s_lshl_b32 s14, s11, 9
    s_add_u32 s12, s12, s14
    v_add_u32 v6, s12, v6
    s_waitcnt lgkmcnt(0)
    """)
    for st in (8, 4, 2, 1):
        for j in range(st): a(f'v_add_f32 v{8+j}, v{8+j}, v{8+j+st}')
    a(f'global_store_dword v6, v8, s[4:5] offset:{MODP} {OPT["wt"]}')
    a.branch('s_branch L_k1_end')

def row16_allsum(a, r):
    for sh in (8, 4, 2, 1):
        a(f'v_add_f32_dpp v{r}, v{r}, v{r} row_ror:{sh} row_mask:0xf bank_mask:0xf')

def ln_scalars(a, mean, var):
    rnd1(a, mean)
    rnd1(a, var)
    a(f'v_add_f32 v{var}, {hx(f32(1e-5))}, v{var}')
    rnd1(a, var)
    a(f'v_sqrt_f32 v{var}, v{var}')
    rnd1(a, var)
    a(f'v_rcp_f32 v{var}, v{var}')

LN1_STRIDE = 1184
def role_ln1(a):
    a(f"""
    s_load_dwordx2 s[6:7], s[0:1], {A_U}
    s_and_b32 s10, s3, 7
    s_lshr_b32 s11, s3, 3
    s_lshl_b32 s10, s10, 4
    s_add_u32 s10, s10, s11
    v_lshrrev_b32 v1, 4, v0
    v_and_b32 v2, 15, v0
    s_lshl_b32 s11, s10, 4
    v_add_u32 v3, s11, v1
    v_mul_u32_u24 v3, 1152, v3
    v_lshl_add_u32 v3, v2, 3, v3
    s_waitcnt lgkmcnt(0)
    """)
    P0, X0 = 8, 26
    for i in range(9): a(f'global_load_dwordx2 v[{P0+2*i}:{P0+2*i+1}], v3, s[6:7] offset:{128*i}')
    a(f"""
    v_mul_u32_u24 v4, {LN1_STRIDE}, v1
    v_lshl_add_u32 v4, v2, 3, v4
    s_mov_b32 s12, 0xffff0000
    """)
    for i in range(9):
        a(f's_waitcnt vmcnt({8-i})')
        for q in range(2): unpack(a, X0+4*i+2*q, X0+4*i+2*q+1, P0+2*i+q, 's12')
    a(f'v_add_f32 v5, v{X0}, v{X0+1}')
    a(f'v_add_f32 v6, v{X0+2}, v{X0+3}')
    for j in range(4, 36, 2):
        a(f'v_add_f32 v5, v5, v{X0+j}')
        a(f'v_add_f32 v6, v6, v{X0+j+1}')
    a('v_add_f32 v5, v5, v6')
    row16_allsum(a, 5)
    a(f'v_mul_f32 v5, {hx(f32(1.0/576))}, v5')
    a('v_mov_b32 v6, 0')
    a('v_mov_b32 v7, 0')
    for j in range(0, 36, 2):
        a(f'v_sub_f32 v{P0}, v{X0+j}, v5')
        a(f'v_sub_f32 v{P0+1}, v{X0+j+1}, v5')
        a(f'v_fmac_f32 v6, v{P0}, v{P0}')
        a(f'v_fmac_f32 v7, v{P0+1}, v{P0+1}')
    a('v_add_f32 v6, v6, v7')
    row16_allsum(a, 6)
    a(f'v_mul_f32 v6, {hx(f32(1.0/576))}, v6')
    ln_scalars(a, 5, 6)
    for j in range(0, 36, 2):
        x0, x1, p = X0+j, X0+j+1, P0+j//2
        a(f'v_sub_f32 v{x0}, v{x0}, v5')
        a(f'v_sub_f32 v{x1}, v{x1}, v5')
        a(f'v_cvt_pk_bf16_f32 v{p}, v{x0}, v{x1}')
        unpack(a, x0, x1, p, 's12')
        a(f'v_mul_f32 v{x0}, v{x0}, v6')
        a(f'v_mul_f32 v{x1}, v{x1}, v6')
        a(f'v_cvt_pk_bf16_f32 v{p}, v{x0}, v{x1}')
        if j % 4 == 2:
            i = j // 4
            a(f'ds_write_b64 v4, v[{P0+2*i}:{P0+2*i+1}] offset:{128*i}')
    a(f"""
    v_and_b32 v5, 63, v0
    v_lshrrev_b32 v5, 2, v5            ; 4g + (i>>2)
    v_mul_u32_u24 v5, {LN1_STRIDE}, v5
    v_and_b32 v6, 3, v0
    v_lshl_add_u32 v5, v6, 3, v5
    v_lshrrev_b32 v6, 6, v0            ; wave
    v_lshl_add_u32 v5, v6, 5, v5
    v_lshl_add_u32 v7, v6, 4, v2       ; 16w + i
    v_lshlrev_b32 v7, 12, v7
    v_bfe_u32 v6, v0, 4, 2             ; g
    v_lshl_add_u32 v7, v6, 3, v7
    s_lshl_b32 s11, s10, 5
    s_add_u32 s11, s11, {N1T}
    v_add_u32 v7, s11, v7
    s_waitcnt lgkmcnt(0)
    s_barrier
    """)
    for j in range(9): a(f'ds_read_b64_tr_b16 v[{P0+2*j}:{P0+2*j+1}], v5 offset:{128*j}')
    for j in range(9):
        a(f's_waitcnt lgkmcnt({8-j})')
        a(f'global_store_dwordx2 v7, v[{P0+2*j}:{P0+2*j+1}], s[4:5] {OPT["n1st"]}')
        if j < 8: a(f'v_add_u32 v7, {64*4096}, v7')
    a.branch('s_branch L_k1_end')

def role_kgen(a):
    a(f"""
    s_load_dwordx4 s[8:11], s[0:1], {A_ARE}
    s_load_dwordx4 s[12:15], s[0:1], {A_BRE}
    s_load_dwordx4 s[16:19], s[0:1], {A_CRE}
    s_load_dwordx2 s[20:21], s[0:1], {A_LDT}
    v_and_b32 v1, 31, v0               ; idx
    v_lshrrev_b32 v2, 6, v0            ; wave
    v_lshl_add_u32 v3, v2, 5, v1       ; mode
    s_lshl_b32 s22, s3, 8
    v_lshlrev_b32 v4, 1, v3
    v_add_u32 v4, s22, v4
    s_lshl_b32 s23, s3, 1
    v_mov_b32 v5, s23
    s_waitcnt lgkmcnt(0)
    global_load_ushort v16, v5, s[20:21]
    global_load_ushort v10, v4, s[8:9] {OPT['nt']}
    global_load_ushort v11, v4, s[10:11] {OPT['nt']}
    global_load_ushort v12, v4, s[12:13] {OPT['nt']}
    global_load_ushort v13, v4, s[14:15] {OPT['nt']}
    global_load_ushort v14, v4, s[16:17] {OPT['nt']}
    global_load_ushort v15, v4, s[18:19] {OPT['nt']}
    v_lshlrev_b32 v7, 3, v1
    v_cvt_f32_u32 v7, v7
    v_mov_b32 v6, v1                   ; idx<8
    v_lshlrev_b32 v17, 1, v1
    v_add_u32 v17, 240, v17            ; 256+2(idx-8)
    v_cmp_le_u32 vcc, 8, v1
    v_cndmask_b32 v6, v6, v17, vcc
    v_and_b32 v17, 2, v1
    v_lshlrev_b32 v17, 7, v17
    v_and_b32 v18, 1, v1
    v_lshl_add_u32 v17, v18, 2, v17
    v_add_u32 v17, 512, v17
    v_cmp_le_u32 vcc, 12, v1
    v_cndmask_b32 v6, v6, v17, vcc
    v_subrev_u32 v17, 12, v1
    v_lshlrev_b32 v17, 8, v17
    v_cmp_le_u32 vcc, 16, v1
    v_cndmask_b32 v6, v6, v17, vcc
    v_cmp_le_u32 vcc, 21, v1
    v_cndmask_b32 v6, v6, v1, vcc
    v_cvt_f32_u32 v6, v6
    v_bfe_u32 v19, v0, 5, 1            ; hi
    v_cvt_f32_u32 v8, v19
    v_mul_f32 v8, 0x3e800000, v8       ; 0.25*hi
    v_sub_f32 v9, 0, v8
    s_waitcnt vmcnt(0)
    """)
    a.raw(';MARK0')
    for r in range(10, 17): a(f'v_lshlrev_b32 v{r}, 16, v{r}')
    a(f'v_mul_f32 v16, {hx(LOG2E)}, v16')
    a('v_exp_f32 v16, v16')
    rnd1(a, 16)
    a(f"""
    v_mul_f32 v20, v16, v10
    v_mul_f32 v21, v16, v11
    v_mul_f32 v12, v16, v12
    v_mul_f32 v13, v16, v13
    v_mul_f32 v20, {hx(LOG2E)}, v20
    v_mul_f32 v21, {hx(INV2PI)}, v21
    v_mul_f32 v22, v14, v12
    v_mul_f32 v23, v14, v13
    v_fma_f32 v22, -v15, v13, v22
    v_fma_f32 v23, v15, v12, v23
    v_lshlrev_b32 v4, 4, v3
    ds_write_b128 v4, v[20:23]
    v_lshlrev_b32 v4, 9, v2
    """)
    ACC = 32
    for r in range(16): a(f'v_mov_b32 v{ACC+r}, 0')
    a('s_mov_b32 s22, 8')
    a('s_waitcnt lgkmcnt(0)')
    a.label('L_kgen_loop')
    PR = 48
    for m in range(4): a(f'ds_read_b128 v[{PR+4*m}:{PR+4*m+3}], v4 offset:{16*m}')
    a('v_add_u32 v4, 64, v4')
    for pair in range(2):
        a(f's_waitcnt lgkmcnt({2-2*pair})')
        seq = []
        for m in (2*pair, 2*pair+1):
            al, be, cr, ci = [PR+4*m+q for q in range(4)]
            t = 10 + 8*(m & 1)
            seq.append([
                f'v_mul_f32 v{t}, v{al}, v6', f'v_mul_f32 v{t+1}, v{al}, v7',
                f'v_fma_f32 v{t+2}, v{be}, v6, v8', f'v_fma_f32 v{t+3}, v{be}, v7, v9',
                f'v_exp_f32 v{t}, v{t}', f'v_exp_f32 v{t+1}, v{t+1}',
                f'v_fract_f32 v{t+2}, v{t+2}', f'v_fract_f32 v{t+3}, v{t+3}',
                f'v_cos_f32 v{t+4}, v{t+2}', f'v_sin_f32 v{t+5}, v{t+2}', f'v_cos_f32 v{t+3}, v{t+3}',
                f'v_mul_f32 v{t+4}, v{cr}, v{t+4}', f'v_fma_f32 v{t+4}, -v{ci}, v{t+5}, v{t+4}',
                f'v_mul_f32 v{t+7}, v{t+1}, v{t+3}', f'v_mul_f32 v{t+6}, v{t}, v{t+4}',
                f'v_mfma_f32_32x32x2_f32 v[{ACC}:{ACC+15}], v{t+6}, v{t+7}, v[{ACC}:{ACC+15}]'])
        for x, y in zip(*seq): a(x); a(y)
    a('s_sub_u32 s22, s22, 1')
    a('s_cmp_lg_u32 s22, 0')
    a.branch('s_cbranch_scc1 L_kgen_loop', flush=False)
    TB = 2048
    a.raw(';MARK1')
    a(f"""
    v_bfe_u32 v19, v0, 5, 1
    v_mul_u32_u24 v4, 3072, v2
    v_add_u32 v4, {TB}, v4
    v_lshl_add_u32 v10, v1, 5, v4
    v_lshl_add_u32 v10, v19, 4, v10    ; (8j+4hi)*4
    ; regs 4..7
    v_lshlrev_b32 v11, 4, v1
    v_add_u32 v11, 1024, v11           ; hi=0: (256+4j)*4
    v_add_u32 v12, 8, v11
    v_lshlrev_b32 v13, 3, v1
    v_add_u32 v14, {448*4}, v13
    v_add_u32 v13, {384*4}, v13
    v_cmp_eq_u32 vcc, 1, v19
    v_cndmask_b32 v11, v11, v13, vcc
    v_cndmask_b32 v12, v12, v14, vcc
    v_add_u32 v11, v11, v4
    v_add_u32 v12, v12, v4
    v_lshl_add_u32 v13, v19, 7, v1
    v_lshl_add_u32 v13, v13, 2, v4     ; (128hi+j)*4
    """)
    a(f'ds_write_b128 v10, v[{ACC}:{ACC+3}]')
    a(f'ds_write_b64 v11, v[{ACC+4}:{ACC+5}]')
    a(f'ds_write_b64 v12, v[{ACC+6}:{ACC+7}]')
    for r in range(4): a(f'ds_write_b32 v13, v{ACC+8+r} offset:{2048+128*r}')
    a(f"""
    v_lshlrev_b32 v4, 2, v0
    s_waitcnt lgkmcnt(0)
    s_barrier
    """)
    for q in range(3):
        for w in range(4): a(f'ds_read_b32 v{10+4*q+w}, v4 offset:{TB+3072*w+1024*q}')
    FT = TB + 4*3072
    G0 = 32
    a('v_lshlrev_b32 v5, 3, v0')
    for i in range(0, 8, 2):
        a(f'v_add_u32 v{G0+i}, {7-i}, v5')
        a(f'v_add_u32 v{G0+i+1}, {6-i}, v5')
        a(f'v_cvt_f32_u32 v24, v{G0+i}')
        a(f'v_cvt_f32_u32 v25, v{G0+i+1}')
        a('v_cvt_pk_bf16_f32 v24, v24, v25')
        a('v_lshrrev_b32 v25, 16, v24')
        a('v_and_b32 v24, 0xffff, v24')
        a(f'v_subrev_u32 v24, {0x4300-128}, v24')
        a(f'v_subrev_u32 v25, {0x4300-128}, v25')
        if i == 0: a('v_cmp_le_u32 vcc, 16, v0')
        a(f'v_cndmask_b32 v{G0+i}, v{G0+i}, v24, vcc')
        a(f'v_cndmask_b32 v{G0+i+1}, v{G0+i+1}, v25, vcc')
        a(f'v_lshlrev_b32 v{G0+i}, 1, v{G0+i}')
        a(f'v_lshlrev_b32 v{G0+i+1}, 1, v{G0+i+1}')
    a('v_lshlrev_b32 v4, 1, v0')
    a('s_waitcnt lgkmcnt(0)')
    for q in range(3):
        b = 10+4*q
        a(f'v_add_f32 v{b}, v{b}, v{b+1}')
        a(f'v_add_f32 v{b+2}, v{b+2}, v{b+3}')
        a(f'v_add_f32 v{b}, v{b}, v{b+2}')
        a(f'v_cvt_pk_bf16_f32 v{b}, v{b}, v{b}')
        a(f'ds_write_b16 v4, v{b} offset:{FT+512*q}')
    a(f"""
    s_lshl_b32 s22, s3, 12
    s_add_u32 s22, s22, {KT}
    v_lshlrev_b32 v5, 4, v0
    v_add_u32 v5, s22, v5
    s_waitcnt lgkmcnt(0)
    s_barrier
    """)
    for i in range(8):
        a(f'ds_read_u16 v{16+i}, v{G0+i} offset:{FT}')
    a('s_waitcnt lgkmcnt(0)')
    for i in range(4): a(f'v_lshl_or_b32 v{12+i}, v{17+2*i}, 16, v{16+2*i}')
    a.raw(';MARK2')
    a(f'global_store_dwordx4 v5, v[12:15], s[4:5] {OPT["wt"]}')
    a.branch('s_branch L_k1_end')

def transpose8(a, R, O, s_lo, s_hi, emit_store):
    for j in range(8):
        for p in range(4):
            a(f'v_perm_b32 v{O+4*j+p}, v{R+4*(2*p+1)+j//2}, v{R+4*(2*p)+j//2}, {s_hi if j & 1 else s_lo}')
        emit_store(j)

def role_repack(a, end):
    R, O = 8, 40
    a(f"""
    v_lshrrev_b32 v1, 6, v0
    v_and_b32 v2, 63, v0               ; lane
    s_load_dwordx4 s[8:11], s[0:1], {B_WG}
    s_load_dwordx2 s[12:13], s[0:1], {B_WD}
    v_readfirstlane_b32 s14, v1
    s_lshl_b32 s15, s3, 2
    s_add_u32 s14, s14, s15            ; task
    s_mov_b32 s20, 0x05040100
    s_mov_b32 s21, 0x07060302
    v_lshrrev_b32 v3, 4, v2            ; g
    s_cmp_ge_u32 s14, 1296
    """)
    a.branch(f's_cbranch_scc1 {end}_wd')
    a(f"""
    s_cmp_ge_u32 s14, 648
    s_cselect_b32 s15, 1, 0            ; mat
    s_mul_i32 s16, s15, 648
    s_sub_u32 s14, s14, s16
    s_mul_i32 s16, s14, 1821
    s_lshr_b32 s16, s16, 16            ; s = rem/36
    s_mul_i32 s17, s16, 36
    s_sub_u32 s17, s14, s17            ; G
    s_mul_i32 s18, s16, {32*9216}
    s_lshl_b32 s19, s17, 8
    s_add_u32 s18, s18, s19
    v_mul_u32_u24 v4, {8*9216}, v3
    v_and_b32 v5, 15, v2
    v_lshl_add_u32 v4, v5, 4, v4
    v_add_u32 v4, s18, v4
    s_waitcnt lgkmcnt(0)
    s_cmp_eq_u32 s15, 1
    s_cselect_b32 s8, s10, s8
    s_cselect_b32 s9, s11, s9
    """)
    for i in range(8):
        a(f'global_load_dwordx4 v[{R+4*i}:{R+4*i+3}], v4, s[8:9] {OPT["nt"]}')
        if i < 7: a('v_add_u32 v4, 9216, v4')
    a(f"""
    s_mul_i32 s18, s17, {8*36}
    s_lshl_b32 s19, s16, 1
    s_add_u32 s18, s18, s19
    s_add_u32 s18, s18, s15
    s_lshl_b32 s18, s18, 10
    s_add_u32 s18, s18, {WGU}
    v_lshlrev_b32 v5, 4, v2
    v_add_u32 v5, s18, v5
    s_waitcnt vmcnt(0)
    """)
    def st(j):
        a(f'global_store_dwordx4 v5, v[{O+4*j}:{O+4*j+3}], s[4:5] {OPT["wt"]}')
        if j < 7: a('v_add_u32 v5, 36864, v5')
    transpose8(a, R, O, 's20', 's21', st)
    a.branch(f's_branch {end}')
    a.label(f'{end}_wd')
    a(f"""
    s_sub_u32 s14, s14, 1296
    s_mul_i32 s16, s14, 7282
    s_lshr_b32 s16, s16, 16            ; sp = t2/9
    s_mul_i32 s17, s16, 9
    s_sub_u32 s17, s14, s17            ; cgp
    v_and_b32 v5, 7, v2                ; c8
    v_bfe_u32 v6, v2, 3, 1             ; e
    s_lshr_b32 s18, s16, 1
    s_lshl_b32 s18, s18, 7
    s_and_b32 s19, s16, 1
    s_lshl_b32 s19, s19, 2
    s_add_u32 s18, s18, s19
    v_lshlrev_b32 v4, 5, v3
    v_lshl_add_u32 v4, v6, 1, v4
    v_add_u32 v4, s18, v4
    v_mul_u32_u24 v4, 1152, v4
    v_lshl_add_u32 v4, v5, 4, v4
    s_lshl_b32 s18, s17, 7
    v_add_u32 v4, s18, v4
    s_waitcnt lgkmcnt(0)
    """)
    for i in range(4):
        a(f'global_load_dwordx4 v[{R+4*i}:{R+4*i+3}], v4, s[12:13] {OPT["nt"]}')
        a(f'global_load_dwordx4 v[{R+4*(i+4)}:{R+4*(i+4)+3}], v4, s[12:13] offset:1152 {OPT["nt"]}')
        if i < 3: a(f'v_add_u32 v4, {8*1152}, v4')
    a(f"""
    ; dtile = 4cgp + (c8>>1); cb = dtile/9; tt = dtile%9
    s_lshl_b32 s18, s17, 2
    v_lshrrev_b32 v7, 1, v5
    v_add_u32 v7, s18, v7
    v_mul_u32_u24 v1, 57, v7
    v_lshrrev_b32 v1, 9, v1            ; cb
    v_mul_u32_u24 v1, {144*9-9}, v1
    v_add_u32 v7, v7, v1
    s_lshl_b32 s18, s16, 1
    v_add_u32 v6, s18, v6              ; s2
    v_mul_u32_u24 v6, 9, v6
    v_add_u32 v7, v7, v6
    v_lshlrev_b32 v7, 10, v7
    v_lshl_add_u32 v7, v3, 8, v7       ; + g*256
    v_and_b32 v5, 1, v5
    v_lshl_add_u32 v7, v5, 7, v7       ; + (c8&1)*128
    v_add_u32 v7, {WD}, v7
    s_waitcnt vmcnt(0)
    """)
    transpose8(a, R, O, 's20', 's21', lambda j: a(f'global_store_dwordx4 v7, v[{O+4*j}:{O+4*j+3}], s[4:5] offset:{16*j} {OPT["wdst"]}'))
    a.branch(f's_branch {end}')

def k1():
    a = Asm()
    b1, b2, b3, tot = NG_GEMV, NG_GEMV+NG_LN1, NG_GEMV+NG_LN1+NG_KGEN, NG_GEMV+NG_LN1+NG_KGEN+NG_REP
    a(f"""
    s_cmp_ge_u32 s2, {tot}
    s_cbranch_scc1 L_k1_end
    s_load_dwordx2 s[4:5], s[0:1], {D_WS}
    s_sub_u32 s3, s2, {b3}
    s_cmp_ge_u32 s2, {b3}
    s_cbranch_scc1 L_k1_rep
    s_sub_u32 s3, s2, {b2}
    s_cmp_ge_u32 s2, {b2}
    s_cbranch_scc1 L_k1_kgen
    s_sub_u32 s3, s2, {b1}
    s_cmp_ge_u32 s2, {b1}
    s_cbranch_scc1 L_k1_ln1
    s_mov_b32 s3, s2
    """)
    role_gemv(a)
    a.label('L_k1_ln1'); role_ln1(a)
    a.label('L_k1_kgen'); role_kgen(a)
    a.label('L_k1_rep'); role_repack(a, 'L_k1_end')
    a.label('L_k1_end')
    return ('prep_kernel', a.text(), dict(vgpr=72, sgpr=32, accum=72), tot, 256, 16*LN1_STRIDE)

def k2():
    a = Asm()
    KL = 0
    HL = 4352
    YL = HL + 5376
    lds = YL + 4352
    a(f"""
    s_cmp_ge_u32 s2, 576
    s_cbranch_scc1 L_k2_end
    s_load_dwordx2 s[4:5], s[0:1], {D_WS}
    s_load_dwordx2 s[6:7], s[0:1], {A_DSK}
    s_and_b32 s3, s2, 7
    s_mul_i32 s3, s3, 72
    s_lshr_b32 s8, s2, 3
    s_add_u32 s3, s3, s8               ; d
    s_lshl_b32 s8, s3, 12
    v_lshlrev_b32 v1, 4, v0
    v_add_u32 v2, s8, v1
    v_add_u32 v3, {KT}, v2
    v_add_u32 v2, {N1T}, v2
    v_and_b32 v4, 63, v0
    v_min_u32 v5, 23, v4
    v_lshrrev_b32 v6, 2, v5
    v_and_b32 v5, 3, v5
    v_mul_u32_u24 v6, {576*4}, v6
    v_mul_u32_u24 v5, {3456*4}, v5
    s_lshl_b32 s9, s3, 2
    v_add3_u32 v5, v5, v6, s9
    s_lshl_b32 s9, s3, 1
    v_mov_b32 v6, s9
    s_waitcnt lgkmcnt(0)
    global_load_dword v7, v5, s[4:5] offset:{MODP}
    global_load_dwordx4 v[8:11], v2, s[4:5]
    global_load_dwordx4 v[12:15], v3, s[4:5]
    global_load_ushort v16, v6, s[6:7]
    v_mov_b32 v20, 0
    v_mov_b32 v21, 0
    v_mov_b32 v22, 0
    v_mov_b32 v23, 0
    v_and_b32 v17, 15, v0
    v_lshlrev_b32 v17, 4, v17
    ds_write_b128 v17, v[20:23] offset:{KL}
    v_mov_b32 v18, {HL}
    ds_write_b128 v18, v[20:23]
    v_lshrrev_b32 v18, 4, v0           ; n
    v_bfe_u32 v19, v0, 2, 2            ; g
    v_lshl_add_u32 v24, v19, 4, v18
    v_mul_u32_u24 v24, 84, v24
    v_and_b32 v25, 3, v0
    v_lshl_add_u32 v24, v25, 4, v24
    v_add_u32 v24, {HL+16}, v24
    v_lshrrev_b32 v26, 2, v0
    v_add_u32 v26, 1, v26
    v_lshrrev_b32 v27, 2, v26
    v_and_b32 v26, 3, v26
    v_lshl_add_u32 v26, v26, 4, v27
    v_mul_u32_u24 v26, 84, v26
    v_add_u32 v26, {HL}, v26
    s_mov_b32 s12, 0xffff0000
    s_waitcnt vmcnt(3)
    v_add_f32_dpp v7, v7, v7 quad_perm:[1,0,3,2] row_mask:0xf bank_mask:0xf
    v_add_f32_dpp v7, v7, v7 quad_perm:[2,3,0,1] row_mask:0xf bank_mask:0xf
    """)
    rnd1(a, 7)
    a('v_add_f32 v28, 1.0, v7')
    rnd1(a, 28)
    a(f"""
    v_readlane_b32 s13, v7, 0          ; sa
    v_readlane_b32 s14, v28, 4         ; 1+ca
    v_readlane_b32 s15, v7, 8          ; ga
    v_cmp_eq_u32 vcc, 16, v0
    v_cndmask_b32 v7, v7, v28, vcc
    v_mov_b32 v29, {576*4}
    v_cndmask_b32 v29, v29, v20, vcc
    v_mov_b32 v30, {2*576*4}
    v_cmp_eq_u32 vcc, 20, v0
    v_cndmask_b32 v29, v29, v30, vcc
    s_lshl_b32 s9, s3, 2
    s_add_u32 s9, s9, {MODF}
    v_add_u32 v29, s9, v29
    v_readfirstlane_b32 s16, v0
    s_waitcnt vmcnt(0)
    """)
    a.raw(';MARK0')
    a(f'ds_write_b128 v1, v[12:15] offset:{KL+256}')
    H = 32
    for q in range(4):
        unpack(a, H+2*q, H+2*q+1, 8+q, 's12')
        a(f'v_mul_f32 v{H+2*q}, s14, v{H+2*q}')
        a(f'v_mul_f32 v{H+2*q+1}, s14, v{H+2*q+1}')
        a(f'v_cvt_pk_bf16_f32 v{8+q}, v{H+2*q}, v{H+2*q+1}')
        unpack(a, H+2*q, H+2*q+1, 8+q, 's12')
        a(f'v_add_f32 v{H+2*q}, s13, v{H+2*q}')
        a(f'v_add_f32 v{H+2*q+1}, s13, v{H+2*q+1}')
        a(f'v_cvt_pk_bf16_f32 v{8+q}, v{H+2*q}, v{H+2*q+1}')
        unpack(a, H+2*q, H+2*q+1, 8+q, 's12')
    a(f"""
    ds_write2_b32 v24, v8, v9 offset0:0 offset1:1
    ds_write2_b32 v24, v10, v11 offset0:2 offset1:3
    v_cmp_eq_u32 s[18:19], 3, v25
    v_cmp_ne_u32 vcc, 255, v0
    s_and_b64 vcc, vcc, s[18:19]
    s_and_saveexec_b64 s[18:19], vcc
    ds_write2_b32 v26, v8, v9 offset0:0 offset1:1
    ds_write2_b32 v26, v10, v11 offset0:2 offset1:3
    s_mov_b64 exec, s[18:19]
    v_lshlrev_b32 v16, 16, v16         ; Dskip
    v_lshrrev_b32 v17, 6, v0           ; rho
    v_mul_u32_u24 v18, 84, v4
    v_lshl_add_u32 v18, v17, 2, v18
    v_add_u32 v18, {HL}, v18
    v_and_b32 v19, 15, v0
    v_bfe_u32 v24, v0, 4, 2
    v_lshlrev_b32 v25, 2, v24
    v_sub_u32 v25, v19, v25
    v_add_u32 v25, 13, v25
    v_lshlrev_b32 v25, 4, v25
    v_mul_u32_u24 v26, 68, v19
    v_lshl_add_u32 v26, v24, 4, v26
    v_add_u32 v26, v26, v17
    v_lshlrev_b32 v26, 2, v26
    v_cmp_ne_u32 vcc, 8, v19
    v_cndmask_b32 v27, 0, 1.0, vcc
    s_waitcnt lgkmcnt(0)
    s_barrier
    """)
    a.raw(';MARK1')
    V0, E, O, P = 41, 42, 58, 74
    E = 42
    a(f'ds_read_b32 v{V0}, v18')
    for q in range(8): a(f'ds_read2_b32 v[{E+2*q}:{E+2*q+1}], v18 offset0:{1+2*q} offset1:{2+2*q}')
    AF = 90
    NAF = 8
    Z = 122
    steps = [(t, u) for t in range(15, -1, -1) for u in range(4)]
    def aload(k):
        t, u = steps[k]
        r = AF + 4*(k % NAF)
        a(f'ds_read_b128 v[{r}:{r+3}], v25 offset:{KL + 256*t + 16*(3-u)}')
    PD = 6
    for k in range(PD): aload(k)
    a(f's_waitcnt lgkmcnt({PD})')
    for j in range(16):
        a(f'v_alignbit_b32 v{O+j}, v{E+j}, v{E+j-1}, 16')
    for j in range(16):
        a(f'v_mov_b32 v{P+j}, v{O+j}')
    for j in range(16):
        a(f'v_mov_b32_dpp v{P+j}, v{E+j} row_shr:8 row_mask:0xf bank_mask:0xc')
    pend = None
    zi = 0
    prev = None
    merge = []
    for k, (t, u) in enumerate(steps):
        if k + PD < len(steps): aload(k + PD)
        outstanding = min(PD, len(steps) - 1 - k)
        a(f's_waitcnt lgkmcnt({outstanding})')
        r = AF + 4*(k % NAF)
        z = Z + 8*(zi % 3)
        if t >= 8:
            c = '0' if u == 0 else f'v[{z}:{z+3}]'
            a(f'v_mfma_f32_16x16x32_bf16 v[{z}:{z+3}], v[{r}:{r+3}], v[{P+4*u}:{P+4*u+3}], {c}')
        else:
            for (zz, B) in ((z, O), (z+4, E)):
                c = '0' if u == 0 else f'v[{zz}:{zz+3}]'
                a(f'v_mfma_f32_16x16x32_bf16 v[{zz}:{zz+3}], v[{r}:{r+3}], v[{B+4*u}:{B+4*u+3}], {c}')
        if u == 2 and merge:
            for x in merge: a(x)
            merge = []
        if u == 3:
            if prev is None: merge = []
            elif t >= 8:
                merge = [f'v_fmac_f32_dpp v{z+q}, v{prev+q}, v27 row_shr:1 row_mask:0xf bank_mask:0xf bound_ctrl:0' for q in range(4)]
            elif t == 7:
                merge = []
                for q in range(4):
                    merge.append(f'v_mov_b32_dpp v{prev+4+q}, v{prev+q} row_shl:8 row_mask:0xf bank_mask:0xf bound_ctrl:0')
                for q in range(4):
                    merge.append(f'v_mov_b32_dpp v{prev+q}, v20 row_shr:1 row_mask:0xf bank_mask:0xc bound_ctrl:0')
                for q in range(8):
                    merge.append(f'v_add_f32_dpp v{z+q}, v{prev+q}, v{z+q} row_shr:1 row_mask:0xf bank_mask:0xf bound_ctrl:0')
            else:
                merge = [f'v_add_f32_dpp v{z+q}, v{prev+q}, v{z+q} row_shr:1 row_mask:0xf bank_mask:0xf bound_ctrl:0' for q in range(8)]
            prev = z
            zi += 1
    for x in merge: a(x)
    a.raw(';MARK2')
    for q in range(4):
        a(f'v_cvt_pk_bf16_f32 v{8+q}, v{prev+q}, v{prev+4+q}')
        a(f'ds_write_b32 v26, v{8+q} offset:{YL+16*q}')
    a(f"""
    v_lshrrev_b32 v18, 4, v0
    v_lshl_add_u32 v18, v18, 4, v1     ; 16t + 16*(t>>4)
    v_add_u32 v2, {GT-N1T}, v2
    s_waitcnt lgkmcnt(0)
    s_barrier
    ds_read_b128 v[8:11], v18 offset:{YL}
    """)
    for q in range(8): a(f'v_mul_f32 v{H+q}, v16, v{H+q}')
    for q in range(4):
        a(f'v_cvt_pk_bf16_f32 v{12+q}, v{H+2*q}, v{H+2*q+1}')
        unpack(a, H+2*q, H+2*q+1, 12+q, 's12')
    a('s_waitcnt lgkmcnt(0)')
    for q in range(4):
        unpack(a, 20, 21, 8+q, 's12')
        a(f'v_add_f32 v20, v20, v{H+2*q}')
        a(f'v_add_f32 v21, v21, v{H+2*q+1}')
        a(f'v_cvt_pk_bf16_f32 v{8+q}, v20, v21')
        unpack(a, 20, 21, 8+q, 's12')
        a('v_mul_f32 v20, s15, v20')
        a('v_mul_f32 v21, s15, v21')
        a(f'v_cvt_pk_bf16_f32 v{8+q}, v20, v21')
    a(f'global_store_dwordx4 v2, v[8:11], s[4:5] {OPT["wt"]}')
    a.raw(';MARK3')
    a('s_cmp_lg_u32 s16, 0')
    a.branch('s_cbranch_scc1 L_k2_end')
    a(f"""
    s_mov_b64 exec, {hex((1<<12)|(1<<16)|(1<<20))}
    global_store_dword v29, v7, s[4:5]
    """)
    a.label('L_k2_end')
    return ('conv_kernel', a.text(), dict(vgpr=146, sgpr=32, accum=148), 576, 256, lds)

def k3():
    a = Asm()
    RED = 576*32
    lds = RED + 9*64*8
    a(f"""
    s_cmp_ge_u32 s2, 128
    s_cbranch_scc1 L_k3_end
    s_load_dwordx2 s[4:5], s[0:1], {D_WS}
    s_load_dwordx2 s[6:7], s[0:1], {A_U}
    s_and_b32 s10, s2, 7
    s_lshr_b32 s11, s2, 3
    s_lshl_b32 s10, s10, 4
    s_add_u32 s10, s10, s11
    s_lshl_b32 s11, s10, 5
    s_add_u32 s11, s11, {GT}
    v_lshlrev_b32 v1, 12, v0
    v_add_u32 v1, s11, v1
    v_and_b32 v2, 15, v0               ; n
    v_bfe_u32 v3, v0, 4, 2             ; g
    v_lshrrev_b32 v4, 6, v0            ; wave
    v_lshlrev_b32 v5, 6, v4
    v_lshl_add_u32 v5, v3, 3, v5       ; d0 = 64w+8g
    s_lshl_b32 s11, s10, 4
    v_add_u32 v6, s11, v2
    v_mul_u32_u24 v6, 1152, v6
    v_lshl_add_u32 v6, v5, 1, v6       ; x offset
    v_lshlrev_b32 v7, 2, v5
    v_add_u32 v7, {MODF}, v7
    s_waitcnt lgkmcnt(0)
    global_load_dwordx4 v[8:11], v1, s[4:5]
    global_load_dwordx4 v[12:15], v1, s[4:5] offset:16
    global_load_dwordx4 v[16:19], v6, s[6:7]
    global_load_dwordx4 v[20:23], v6, s[6:7] offset:64
    """)
    C1, SB = 48, 64
    for e in range(2):
        for hf in range(2):
            a(f'global_load_dwordx4 v[{C1+8*e+4*hf}:{C1+8*e+4*hf+3}], v7, s[4:5] offset:{128*e+16*hf}')
            a(f'global_load_dwordx4 v[{SB+8*e+4*hf}:{SB+8*e+4*hf+3}], v7, s[4:5] offset:{2304+128*e+16*hf}')
    a(f"""
    v_lshlrev_b32 v1, 5, v0
    v_lshrrev_b32 v24, 2, v2
    v_add_u32 v24, v24, v5
    v_lshlrev_b32 v24, 5, v24
    v_and_b32 v25, 3, v0
    v_lshl_add_u32 v24, v25, 3, v24
    s_mov_b32 s12, 0xffff0000
    """)
    a.raw(';MARK0')
    a(f"""
    s_waitcnt vmcnt(10)
    """)
    a.raw(';MARK1')
    a(f"""
    ds_write_b128 v1, v[8:11]
    ds_write_b128 v1, v[12:15] offset:16
    s_waitcnt lgkmcnt(0)
    ds_read_b64_tr_b16 v[8:9], v24
    ds_read_b64_tr_b16 v[10:11], v24 offset:128
    ds_read_b64_tr_b16 v[12:13], v24 offset:1024
    ds_read_b64_tr_b16 v[14:15], v24 offset:1152
    s_waitcnt vmcnt(8) lgkmcnt(0)
    """)
    X = 28
    for q in range(8):
        unpack(a, X+2*q, X+2*q+1, 16+q, 's12')
        unpack(a, 26, 27, 8+q, 's12')
        a(f'v_add_f32 v{X+2*q}, v{X+2*q}, v26')
        a(f'v_add_f32 v{X+2*q+1}, v{X+2*q+1}, v27')
        a(f'v_cvt_pk_bf16_f32 v{16+q}, v{X+2*q}, v{X+2*q+1}')
        unpack(a, X+2*q, X+2*q+1, 16+q, 's12')
    a(f"""
    v_add_u32 v6, {X1}, v6
    global_store_dwordx4 v6, v[16:19], s[4:5] {OPT['x1st']}
    global_store_dwordx4 v6, v[20:23], s[4:5] offset:64 {OPT['x1st']}
    v_add_f32 v8, v{X}, v{X+1}
    v_mul_f32 v9, v{X}, v{X}
    v_fmac_f32 v9, v{X+1}, v{X+1}
    """)
    for q in range(2, 16):
        a(f'v_add_f32 v8, v8, v{X+q}')
        a(f'v_fmac_f32 v9, v{X+q}, v{X+q}')
    a(f"""
    v_lshlrev_b32 v1, 3, v0
    ds_write_b64 v1, v[8:9] offset:{RED}
    v_and_b32 v1, 63, v0
    v_lshlrev_b32 v1, 3, v1
    s_waitcnt lgkmcnt(0)
    s_barrier
    """)
    R = 80
    a.raw(';MARK2')
    for w in range(9): a(f'ds_read_b64 v[{R+2*w}:{R+2*w+1}], v1 offset:{RED+512*w}')
    a(f"""
    s_mul_i32 s11, s10, {18*1024}
    s_add_u32 s11, s11, {H2F}
    v_lshlrev_b32 v1, 1, v1
    v_lshl_add_u32 v1, v4, 11, v1
    v_add_u32 v1, s11, v1
    s_waitcnt lgkmcnt(0)
    """)
    a(f'v_add_f32 v8, v{R}, v{R+2}')
    a(f'v_add_f32 v9, v{R+1}, v{R+3}')
    for w in range(2, 9):
        a(f'v_add_f32 v8, v8, v{R+2*w}')
        a(f'v_add_f32 v9, v9, v{R+2*w+1}')
    for op in ('v_permlane32_swap_b32', 'v_permlane16_swap_b32'):
        a('v_mov_b32 v10, v8')
        a('v_mov_b32 v11, v9')
        a(f'{op} v8, v10')
        a(f'{op} v9, v11')
        a('v_add_f32 v8, v8, v10')
        a('v_add_f32 v9, v9, v11')
    a(f"""
    v_mul_f32 v8, {hx(f32(1.0/576))}, v8
    v_mul_f32 v9, {hx(f32(1.0/576))}, v9
    v_fma_f32 v9, -v8, v8, v9
    v_max_f32 v9, 0, v9
    """)
    ln_scalars(a, 8, 9)
    a('s_waitcnt vmcnt(2)')
    O = 12
    for q in range(8):
        x0, x1, p = X+2*q, X+2*q+1, O+q
        a(f'v_sub_f32 v{x0}, v{x0}, v8')
        a(f'v_sub_f32 v{x1}, v{x1}, v8')
        a(f'v_cvt_pk_bf16_f32 v26, v{x0}, v{x1}')
        unpack(a, x0, x1, 26, 's12')
        a(f'v_mul_f32 v{x0}, v{x0}, v9')
        a(f'v_mul_f32 v{x1}, v{x1}, v9')
        a(f'v_cvt_pk_bf16_f32 v26, v{x0}, v{x1}')
        unpack(a, x0, x1, 26, 's12')
        a(f'v_mul_f32 v{x0}, v{x0}, v{C1+2*q}')
        a(f'v_mul_f32 v{x1}, v{x1}, v{C1+2*q+1}')
        a(f'v_cvt_pk_bf16_f32 v26, v{x0}, v{x1}')
        unpack(a, x0, x1, 26, 's12')
        a(f'v_add_f32 v{x0}, v{x0}, v{SB+2*q}')
        a(f'v_add_f32 v{x1}, v{x1}, v{SB+2*q+1}')
        a(f'v_cvt_pk_bf16_f32 v{R+q}, v{x0}, v{x1}')
    a(f'global_store_dwordx4 v1, v[{R}:{R+3}], s[4:5] {OPT["wt"]}')
    a(f'global_store_dwordx4 v1, v[{R+4}:{R+7}], s[4:5] offset:1024 {OPT["wt"]}')
    a.raw(';MARK3')
    a.label('L_k3_end')
    return ('ln2_kernel', a.text(), dict(vgpr=98, sgpr=32, accum=100), 128, 576, lds)

def build(kernels, path, header=''):
    out = header
    for (name, body, regs, grid, block, lds) in kernels:
        out += f'; @launch kernel={name} grid=({grid},1,1) block=({block},1,1) lds={lds}\n'
    out += '.amdgcn_target "amdgcn-amd-amdhsa--gfx950"\n'
    seen = set()
    for (name, body, regs, grid, block, lds) in kernels:
        if name in seen: continue
        seen.add(name)
        out += kernel_text(name, body, **regs)
    out += '.text\nL_code_end:\n'
    open(path, 'w').write(out)

if __name__ == '__main__':
    build([k1(), k2(), k3()], 'part1.s')
```

```python
import gen, front3, ffn, sys
HEADER = open('adaLN_cond__ssm_conv_s4__glu_gated_reglu__prompt.s.ref').read().split('; Override')[0]
of = dict(nch=1536, xnt='nt', bdelay=1, mask=1, sleep=2)
og = dict(cpf=3, pre1=12, pre2=28, npre=32, xnt='', chk3=6, pub3=2, A0=8, touch=1, t0=0, alook=200, rate=0.8, tneed=44, quiet=50)
gen.build([front3.kf(of), ffn.kg(og)], 'v2a.s', HEADER)
gen.build([front3.kf(dict(of, wdb=1, nch=2000)), ffn.kg(dict(og, touch=0, alook=28, rate=0.7, npre=24, pre1=10, pre2=24))], 'v2b.s', HEADER)
```
